```python
import torch

def _softmax(x, axis=-1):
    return torch.softmax(x, dim=axis)
def _gelu(x):
    return torch.nn.functional.gelu(x, approximate="tanh")
def _silu(x):
    return torch.nn.functional.silu(x)
def _sigmoid(x):
    return torch.sigmoid(x)
def _layernorm(x, axis=-1, eps=1e-5):
    m = x.mean(dim=axis, keepdim=True)
    v = x.var(dim=axis, keepdim=True, unbiased=False)
    return (x - m) / torch.sqrt(v + eps)
def _scatter_add(tgt, idx, src, axis=0):
    return tgt.clone().index_add_(axis, idx, src)
def _segment_sum(src, seg, n):
    out = torch.zeros((n,) + src.shape[1:], dtype=src.dtype)
    return out.index_add_(0, seg, src)
def _pad(x, pw):
    flat = tuple(v for pair in reversed(pw) for v in pair)
    return torch.nn.functional.pad(x, flat)

kernel_name = 'standalone__molecular_angular_gemnet__graph'

def setup_inputs():

    _w = (lambda a: (lambda t: t.to(torch.bfloat16) if t.is_floating_point() else t)(torch.as_tensor(a)))
    N, deg, De, L = 50000, 16, 4, 1
    E = N * deg
    T = E * deg
    NR = 8
    dist = torch.rand(E).to(float)
    angle = (torch.rand(T) * torch.pi).to(float)
    centers = torch.linspace(0.0, 1.0, NR).to(float)
    ang_freq = torch.arange(1, L + 1).to(float)
    return {
        "m": _w((lambda *s: torch.randn(*s, dtype=torch.bfloat16) * 0.05)(E, De)),
        "idx_in": _w((lambda lo, hi, *s: torch.randint(lo, hi, s))(0, E, T).to(torch.int64)),
        "idx_out": _w((lambda lo, hi, *s: torch.randint(lo, hi, s))(0, E, T).to(torch.int64)),
        "dist": _w(dist),
        "angle": _w(angle),
        "centers": _w(centers),
        "ang_freq": _w(ang_freq),
        "w_rbf": _w((lambda *s: torch.randn(*s, dtype=torch.bfloat16) * 0.4)(NR, De)),
        "w_sbf": _w((lambda *s: torch.randn(*s, dtype=torch.bfloat16) * 0.4)(NR * L, De)),
        "w_down": _w((lambda *s: torch.randn(*s, dtype=torch.bfloat16) * 0.4)(De, De)),
        "w_up": _w((lambda *s: torch.randn(*s, dtype=torch.bfloat16) * 0.4)(De, De)),
    }

def reference(m, idx_in, idx_out, dist, angle, centers, ang_freq, w_rbf, w_sbf, w_down, w_up):
    E, De = m.shape[0], m.shape[1]
    NR = centers.shape[0]
    L = ang_freq.shape[0]
    rbf = torch.exp(-10.0 * (dist[:, None] - centers[None, :]) ** 2)
    cbf = torch.cos(ang_freq[None, :] * angle[:, None])
    rbf_t = rbf[idx_out]
    sbf = torch.reshape(rbf_t[:, :, None] * cbf[:, None, :], (-1, NR * L))
    x = (m[idx_in] @ w_down) * (sbf @ w_sbf)
    agg = _segment_sum(x, idx_out, E)
    return m + (agg @ w_up) * (rbf @ w_rbf)
```

```python
HEADER = """; Kernarg layout for this problem (112 bytes, ptrs only, base s[0:1]):
"""
E = 800000
T = 12800000
KA = dict(m=0, idx_in=8, idx_out=16, dist=24, angle=32, centers=40, freq=48, w_rbf=56, w_sbf=64,
          w_down=72, w_up=80, out=88, dbg=96, ws=104)

class Asm:
    def __init__(self):
        self.lines = []
    def __call__(self, s):
        for l in s.strip("\n").split("\n"):
            l = l.strip()
            if l.endswith(":") or l.startswith("."):
                self.lines.append(l)
            else:
                self.lines.append("    " + l)
    def text(self):
        return "\n".join(self.lines) + "\n"

def kernel_begin(a, name):
    a(f""".globl {name}
.p2align 8
.type {name},@function
{name}:""")

def descriptor(name, vgpr, sgpr, accum=None):
    if accum is None:
        accum = (vgpr + 3) // 4 * 4
    return f""".p2align 6
.amdhsa_kernel {name}
  .amdhsa_next_free_vgpr {vgpr}
  .amdhsa_next_free_sgpr {sgpr}
  .amdhsa_accum_offset {accum}
  .amdhsa_group_segment_fixed_size 0
  .amdhsa_kernarg_size 112
  .amdhsa_user_sgpr_count 2
  .amdhsa_user_sgpr_kernarg_segment_ptr 1
  .amdhsa_system_sgpr_workgroup_id_x 1
  .amdhsa_float_denorm_mode_32 3
.end_amdhsa_kernel
"""

def srd(a, d, base, nbytes, off=0):
    if off:
        a(f"s_add_u32 s{d}, s{base}, {off}")
        a(f"s_addc_u32 s{d+1}, s{base+1}, 0")
    else:
        a(f"s_mov_b32 s{d}, s{base}")
        a(f"s_mov_b32 s{d+1}, s{base+1}")
    a(f"s_mov_b32 s{d+2}, {nbytes}")
    a(f"s_mov_b32 s{d+3}, 0x00020000")

def assemble_file(launches, kernels):
    out = HEADER
    for (n, g, b, l) in launches:
        out += f"; @launch kernel={n} grid=({g},1,1) block=({b},1,1) lds={l}\n"
    out += '.amdgcn_target "amdgcn-amd-amdhsa--gfx950"\n.text\n'
    for (n, a, v, s) in kernels:
        out += a.text()
    out += '.section .rodata,"a"\n'
    for (n, a, v, s) in kernels:
        out += descriptor(n, v, s)
    return out
```

```python
from common import *
def epi_load_weights(a, sb):
    WD, WU, PS, PR, C = sb, sb+16, sb+32, sb+48, sb+64
    a(f"s_load_dwordx2 s[4:5], s[0:1], {KA['centers']}")
    a(f"s_load_dwordx4 s[8:11], s[0:1], {KA['w_rbf']}")
    a(f"s_load_dwordx4 s[12:15], s[0:1], {KA['w_down']}")
    a("s_waitcnt lgkmcnt(0)")
    a(f"s_load_dwordx16 s[{WD}:{WD+15}], s[8:9], 0")
    a(f"s_load_dwordx16 s[{WU}:{WU+15}], s[10:11], 0")
    a(f"s_load_dwordx4 s[16:19], s[4:5], 0")
    a("s_waitcnt lgkmcnt(0)")
    for (src, dst) in ((WD, PR), (WU, PS)):
        for p in range(4):
            for j in range(4):
                lo = src + (2*p)*2 + j//2
                hi = src + (2*p+1)*2 + j//2
                op = "s_pack_ll_b32_b16" if j % 2 == 0 else "s_pack_hh_b32_b16"
                a(f"{op} s{dst+4*p+j}, s{lo}, s{hi}")
    for r in range(8):
        if r % 2 == 0:
            a(f"s_lshl_b32 s{C+r}, s{16+r//2}, 16")
        else:
            a(f"s_and_b32 s{C+r}, s{16+r//2}, 0xffff0000")
    a(f"s_load_dwordx8 s[20:27], s[12:13], 0")
    a(f"s_load_dwordx8 s[4:11], s[14:15], 0")
    a("s_waitcnt lgkmcnt(0)")
    for (src, dst) in ((20, WD), (4, WU)):
        for i in range(16):
            if i % 2 == 0:
                a(f"s_lshl_b32 s{dst+i}, s{src+i//2}, 16")
            else:
                a(f"s_and_b32 s{dst+i}, s{src+i//2}, 0xffff0000")

def epi_compute(a, sb, vS, vM, vD, vT, vO, sK):
    WD, WU, PS, PR, C = sb, sb+16, sb+32, sb+48, sb+64
    t = vT
    for r in range(8):
        a(f"v_subrev_f32 v{t+r}, s{C+r}, v{vD}")
    def rnd():
        for p in range(4):
            a(f"v_cvt_pk_bf16_f32 v{t+8+p}, v{t+2*p}, v{t+2*p+1}")
    def unpack():
        for p in range(4):
            a(f"v_lshlrev_b32 v{t+2*p}, 16, v{t+8+p}")
            a(f"v_and_b32 v{t+2*p+1}, s{sK+2}, v{t+8+p}")
    rnd(); unpack()
    for r in range(8):
        a(f"v_mul_f32 v{t+r}, v{t+r}, v{t+r}")
    rnd(); unpack()
    for r in range(8):
        a(f"v_mul_f32 v{t+r}, s{sK+1}, v{t+r}")
    rnd(); unpack()
    for r in range(8):
        a(f"v_mul_f32 v{t+r}, s{sK}, v{t+r}")
    for r in range(8):
        a(f"v_exp_f32 v{t+r}, v{t+r}")
    a("s_nop 0")
    rnd()
    for j in range(4):
        a(f"v_dot2_f32_bf16 v{t+j}, v{t+8}, s{PS+j}, 0")
        a(f"v_dot2_f32_bf16 v{t+4+j}, v{t+8}, s{PR+j}, 0")
    for p in range(1, 4):
        for j in range(4):
            a(f"v_dot2_f32_bf16 v{t+j}, v{t+8+p}, s{PS+4*p+j}, v{t+j}")
            a(f"v_dot2_f32_bf16 v{t+4+j}, v{t+8+p}, s{PR+4*p+j}, v{t+4+j}")
    for j in range(4):
        a(f"v_mul_f32 v{t+12+j}, s{WD+j}, v{vS}")
    for k in range(1, 4):
        for j in range(4):
            a(f"v_fmac_f32 v{t+12+j}, s{WD+4*k+j}, v{vS+k}")
    for j in range(4):
        a(f"v_mul_f32 v{t+12+j}, v{t+12+j}, v{t+j}")
    a(f"v_cvt_pk_bf16_f32 v{t+8}, v{t+4}, v{t+5}")
    a(f"v_cvt_pk_bf16_f32 v{t+9}, v{t+6}, v{t+7}")
    for j in range(4):
        a(f"v_mul_f32 v{t+16+j}, s{WU+j}, v{t+12}")
    for k in range(1, 4):
        for j in range(4):
            a(f"v_fmac_f32 v{t+16+j}, s{WU+4*k+j}, v{t+12+k}")
    for p in range(2):
        a(f"v_lshlrev_b32 v{t+4+2*p}, 16, v{t+8+p}")
        a(f"v_and_b32 v{t+5+2*p}, s{sK+2}, v{t+8+p}")
        a(f"v_lshlrev_b32 v{t+2*p}, 16, v{vM+p}")
        a(f"v_and_b32 v{t+1+2*p}, s{sK+2}, v{vM+p}")
    for j in range(4):
        a(f"v_fmac_f32 v{t+j}, v{t+16+j}, v{t+4+j}")
    a(f"v_cvt_pk_bf16_f32 v{vO}, v{t}, v{t+1}")
    a(f"v_cvt_pk_bf16_f32 v{vO+1}, v{t+2}, v{t+3}")

def epi_consts(a, sK):
    a(f"s_mov_b32 s{sK}, 0x3fb8aa3b")
    a(f"s_mov_b32 s{sK+1}, 0xc1200000")
    a(f"s_mov_b32 s{sK+2}, 0xffff0000")
```

```python
import sys
from common import *
from epi import *
k0 = Asm(); kernel_begin(k0, "zero_kernel")
k0(f"s_load_dwordx2 s[4:5], s[0:1], {KA['ws']}")
k0("s_waitcnt lgkmcnt(0)")
srd(k0, 8, 4, E*16)
k0("""s_lshl_b32 s3, s2, 8
v_add_u32 v1, s3, v0
v_lshlrev_b32 v1, 4, v1
v_mov_b32 v4, 0
v_mov_b32 v5, 0
v_mov_b32 v6, 0
v_mov_b32 v7, 0
buffer_store_dwordx4 v[4:7], v1, s[8:11], 0 offen
s_endpgm""")

k1 = Asm(); kernel_begin(k1, "scat_kernel")
k1(f"""s_cmp_ge_u32 s2, {T//256}
s_cbranch_scc1 L_k1_end
s_load_dwordx4 s[4:7], s[0:1], 0
s_load_dwordx2 s[8:9], s[0:1], {KA['idx_out']}
s_load_dwordx2 s[10:11], s[0:1], {KA['angle']}
s_load_dwordx2 s[12:13], s[0:1], {KA['freq']}
s_load_dwordx2 s[14:15], s[0:1], {KA['ws']}
s_waitcnt lgkmcnt(0)""")
srd(k1, 16, 4, E*8)
srd(k1, 20, 6, T*4)
srd(k1, 24, 8, T*4)
srd(k1, 28, 10, T*2)
srd(k1, 32, 14, E*16)
srd(k1, 36, 12, 2)
k1("""s_lshl_b32 s3, s2, 8
v_add_u32 v1, s3, v0
v_lshlrev_b32 v2, 2, v1
v_lshlrev_b32 v3, 1, v1
v_mov_b32 v10, 0
buffer_load_dword v4, v2, s[20:23], 0 offen
buffer_load_dword v5, v2, s[24:27], 0 offen
buffer_load_ushort v6, v3, s[28:31], 0 offen
buffer_load_ushort v7, v10, s[36:39], 0 offen
s_waitcnt vmcnt(0)
v_lshlrev_b32 v4, 3, v4
buffer_load_dwordx2 v[8:9], v4, s[16:19], 0 offen
v_lshlrev_b32 v6, 16, v6
v_lshlrev_b32 v7, 16, v7
v_mul_f32 v6, v6, v7
v_cvt_pk_bf16_f32 v6, v6, v6
v_and_b32 v6, 0xffff0000, v6
v_mul_f32 v6, 0.15915494, v6
v_fract_f32 v6, v6
v_cos_f32 v6, v6
s_nop 0
v_cvt_pk_bf16_f32 v6, v6, v6
v_and_b32 v6, 0xffff0000, v6
v_lshlrev_b32 v5, 4, v5
s_waitcnt vmcnt(0)
v_lshlrev_b32 v10, 16, v8
v_and_b32 v11, 0xffff0000, v8
v_lshlrev_b32 v12, 16, v9
v_and_b32 v13, 0xffff0000, v9
v_mul_f32 v10, v10, v6
v_mul_f32 v11, v11, v6
v_mul_f32 v12, v12, v6
v_mul_f32 v13, v13, v6
buffer_atomic_add_f32 v10, v5, s[32:35], 0 offen
buffer_atomic_add_f32 v11, v5, s[32:35], 0 offen offset:4
buffer_atomic_add_f32 v12, v5, s[32:35], 0 offen offset:8
buffer_atomic_add_f32 v13, v5, s[32:35], 0 offen offset:12
L_k1_end:
s_endpgm""")

k2 = Asm(); kernel_begin(k2, "epi_kernel")
k2(f"""s_cmp_ge_u32 s2, {E//256}
s_cbranch_scc1 L_k2_end""")
epi_load_weights(k2, 28)
k2(f"""s_load_dwordx2 s[4:5], s[0:1], {KA['m']}
s_load_dwordx2 s[6:7], s[0:1], {KA['dist']}
s_load_dwordx2 s[8:9], s[0:1], {KA['out']}
s_load_dwordx2 s[10:11], s[0:1], {KA['ws']}
s_waitcnt lgkmcnt(0)""")
srd(k2, 12, 4, E*8)
srd(k2, 16, 6, E*2)
srd(k2, 20, 8, E*8)
srd(k2, 24, 10, E*16)
epi_consts(k2, 4)
k2("""s_lshl_b32 s3, s2, 8
v_add_u32 v1, s3, v0
v_lshlrev_b32 v2, 1, v1
v_lshlrev_b32 v3, 3, v1
v_lshlrev_b32 v1, 4, v1
buffer_load_ushort v10, v2, s[16:19], 0 offen
buffer_load_dwordx2 v[8:9], v3, s[12:15], 0 offen
buffer_load_dwordx4 v[4:7], v1, s[24:27], 0 offen
s_waitcnt vmcnt(0)
v_lshlrev_b32 v10, 16, v10""")
epi_compute(k2, 28, 4, 8, 10, 12, 32, 4)
k2("""buffer_store_dwordx2 v[32:33], v3, s[20:23], 0 offen
L_k2_end:
s_endpgm""")

txt = assemble_file([("zero_kernel", E//256, 256, 0), ("scat_kernel", T//256, 256, 0), ("epi_kernel", E//256, 256, 0)],
   [("zero_kernel", k0, 8, 16), ("scat_kernel", k1, 16, 48), ("epi_kernel", k2, 36, 102)])
open(sys.argv[1], "w").write(txt)
```

```python
from common import E, T
NT = 512
TREC = 25000
TS = 150016
NQ = 4
NC = 6
NOB = 64
NKEY = NQ*NC*NOB
D_OB, M_OB = 12512, 343268
D_IR, M_IR = 33338, 128831
WS_REC = 0
WS_OFF = 80 << 20
WS_PART = 84 << 20
WS_DBG = 120 << 20
OFF_TILE = NKEY*4

class SB:
    def __init__(self, a, name, maxn):
        self.a, self.name, self.maxn, self.q = a, name, maxn, []
    def issue(self, tag):
        self.q.append(tag)
    def wait(self, tag):
        if tag not in self.q:
            return
        i = len(self.q) - 1 - self.q[::-1].index(tag)
        n = len(self.q) - 1 - i
        n = min(n, self.maxn)
        self.a(f"s_waitcnt {self.name}({n})")
        self.q = self.q[len(self.q)-n:] if n else []
    def drain(self):
        self.a(f"s_waitcnt {self.name}(0)")
        self.q = []
```

```python
from common import *
from cfg import *

def gen_p1(name="p1_kernel", ld_in="nt", st_rec="", st_off="", stamps=False):
    a = Asm(); kernel_begin(a, name)
    CNT = [0, 6144]; TOT = 12288; IMG = 12304
    LDS = IMG + TREC*6
    NG = 6; TAIL = TREC - NG*4096
    I = [lambda s: 32+s if s < 24 else 28, lambda s: 80+s if s < 24 else 30]
    O = [lambda s: 56+s if s < 24 else 29, lambda s: 104+s if s < 24 else 31]
    vT16, vT8, vOne, vSix = 1, 2, 3, 4
    T0 = 5
    sIn, sOut, sAng, sRec, sOff = 8, 12, 16, 20, 28
    sMob, sNob, sMir, sNir, sFreq, sHi, sTmp, sWave = 32, 33, 34, 35, 36, 37, 38, 39
    sTail = 40
    sSt = 44
    vm = SB(a, "vmcnt", 63); lg = SB(a, "lgkmcnt", 15)
    nst = [0]
    def stamp():
        if stamps:
            a(f"s_memtime s[{sSt+2*nst[0]}:{sSt+2*nst[0]+1}]")
            nst[0] += 1
    a(f"""s_cmp_ge_u32 s2, {NT//2}
s_cbranch_scc1 L_{name}_end
s_load_dwordx4 s[4:7], s[0:1], {KA['idx_in']}
s_load_dwordx2 s[40:41], s[0:1], {KA['angle']}
s_load_dwordx2 s[42:43], s[0:1], {KA['freq']}
s_load_dwordx2 s[36:37], s[0:1], {KA['ws']}
v_lshlrev_b32 v{vT16}, 4, v0
v_lshlrev_b32 v{vT8}, 3, v0
s_mul_i32 s3, s2, {2*TREC*4}
s_waitcnt lgkmcnt(0)""")
    stamp()
    for (d, b) in ((sIn, 4), (sOut, 6)):
        a(f"""s_add_u32 s{d}, s{b}, s3
s_addc_u32 s{d+1}, s{b+1}, 0
s_mov_b32 s{d+2}, {2*TREC*4}
s_mov_b32 s{d+3}, 0x00020000""")
    a(f"""s_lshr_b32 s3, s3, 1
s_add_u32 s{sAng}, s40, s3
s_addc_u32 s{sAng+1}, s41, 0
s_mov_b32 s{sAng+2}, {2*TREC*2}
s_mov_b32 s{sAng+3}, 0x00020000""")
    angreg = {}
    def ld_idx(t, g):
        if g < NG:
            a(f"s_mov_b32 s{sTmp}, {t*TREC*4 + g*16384}")
            a(f"buffer_load_dwordx4 v[{O[t](4*g)}:{O[t](4*g)+3}], v{vT16}, s[{sOut}:{sOut+3}], s{sTmp} offen {ld_in}")
            vm.issue(("o", t, g))
            a(f"buffer_load_dwordx4 v[{I[t](4*g)}:{I[t](4*g)+3}], v{vT16}, s[{sIn}:{sIn+3}], s{sTmp} offen {ld_in}")
            vm.issue(("i", t, g))
        else:
            a(f"s_mov_b32 s{sTmp}, {t*TREC*4 + NG*16384}")
            a(f"v_lshlrev_b32 v{I[t](24)}, 2, v0")
            a(f"v_cndmask_b32 v{I[t](24)}, -16, v{I[t](24)}, s[{sTail}:{sTail+1}]")
            a(f"buffer_load_dword v{O[t](24)}, v{I[t](24)}, s[{sOut}:{sOut+3}], s{sTmp} offen {ld_in}")
            vm.issue(("o", t, g))
            a(f"buffer_load_dword v{I[t](24)}, v{I[t](24)}, s[{sIn}:{sIn+3}], s{sTmp} offen {ld_in}")
            vm.issue(("i", t, g))
    def ld_ang(t, g, r):
        angreg[(t, g)] = r
        if g < NG:
            a(f"s_mov_b32 s{sTmp}, {t*TREC*2 + g*8192}")
            a(f"buffer_load_dwordx2 v[{r}:{r+1}], v{vT8}, s[{sAng}:{sAng+3}], s{sTmp} offen {ld_in}")
        else:
            a(f"s_mov_b32 s{sTmp}, {t*TREC*2 + NG*8192}")
            a(f"v_lshlrev_b32 v{r}, 1, v0")
            a(f"v_cndmask_b32 v{r}, -16, v{r}, s[{sTail}:{sTail+1}]")
            a(f"buffer_load_ushort v{r}, v{r}, s[{sAng}:{sAng+3}], s{sTmp} offen {ld_in}")
        vm.issue(("a", t, g))
    def pktA(g):
        ld_idx(0, g)
        ld_ang(0, g, 20 + 2*(g % 4) if g < NG else 19)
    pktA(0); pktA(1); pktA(2)
    a(f"""s_load_dword s{sFreq+6}, s[42:43], 0
s_mul_i32 s3, s2, {2*TS}
s_add_u32 s{sRec}, s36, s3
s_addc_u32 s{sRec+1}, s37, 0
s_mov_b32 s{sRec+2}, {TREC*6}
s_mov_b32 s{sRec+3}, 0x00020000
s_add_u32 s{sRec+4}, s{sRec}, {TS}
s_addc_u32 s{sRec+5}, s{sRec+1}, 0
s_mov_b32 s{sRec+6}, {TREC*6}
s_mov_b32 s{sRec+7}, 0x00020000
s_mul_i32 s3, s2, {2*OFF_TILE}
s_add_u32 s3, s3, {WS_OFF}
s_add_u32 s{sOff}, s36, s3
s_addc_u32 s{sOff+1}, s37, 0
s_mov_b32 s{sOff+2}, {2*OFF_TILE}
s_mov_b32 s{sOff+3}, 0x00020000""")
    if stamps:
        a(f"s_mov_b64 s[98:99], s[36:37]")
    a(f"""s_mov_b32 s{sMob}, {M_OB}
s_mov_b32 s{sNob}, {-D_OB & 0xffffffff}
s_mov_b32 s{sMir}, {M_IR}
s_mov_b32 s{sNir}, {-D_IR & 0xffffffff}
s_mov_b32 s{sHi}, 0xffff0000
v_mov_b32 v{vOne}, 1
v_mov_b32 v{vSix}, 6
v_lshrrev_b32 v{T0}, 6, v0
v_mov_b32 v6, 0
v_mov_b32 v7, 0
v_mov_b32 v8, 0
v_mov_b32 v9, 0
v_readfirstlane_b32 s{sWave}, v{T0}
s_waitcnt lgkmcnt(0)
s_lshl_b32 s{sFreq}, s{sFreq+6}, 16
v_cmp_gt_u32 vcc, {2*NKEY//4}, v0
s_and_saveexec_b64 s[{sTail}:{sTail+1}], vcc
ds_write_b128 v{vT16}, v[6:9]
s_mov_b64 exec, -1
s_movk_i32 s{sTmp}, {TAIL}
v_cmp_gt_u32 s[{sTail}:{sTail+1}], s{sTmp}, v0
s_waitcnt lgkmcnt(0)
s_barrier""")
    def keys(t, g):
        slots = range(4*g, 4*g+4) if g < NG else [24]
        vm.wait(("o", t, g))
        for k, s in enumerate(slots):
            a(f"v_mul_hi_u32_u24 v{T0+k}, s{sMob}, v{O[t](s)}")
        for k, s in enumerate(slots):
            a(f"v_mad_i32_i24 v{O[t](s)}, v{T0+k}, s{sNob}, v{O[t](s)}")
        vm.wait(("i", t, g))
        for k, s in enumerate(slots):
            a(f"v_mul_hi_u32_u24 v{T0+4+k}, s{sMir}, v{I[t](s)}")
        for k, s in enumerate(slots):
            a(f"v_mad_i32_i24 v{I[t](s)}, v{T0+4+k}, s{sNir}, v{I[t](s)}")
            a(f"v_lshl_add_u32 v{T0+k}, v{T0+4+k}, 6, v{T0+k}")
        for k, s in enumerate(slots):
            a(f"v_lshl_or_b32 v{I[t](s)}, v{O[t](s)}, 16, v{I[t](s)}")
            a(f"v_lshlrev_b32 v{O[t](s)}, 2, v{T0+k}")
        if g == NG:
            a(f"s_mov_b64 exec, s[{sTail}:{sTail+1}]")
        for k, s in enumerate(slots):
            a(f"ds_add_u32 v{O[t](s)}, v{vOne} offset:{CNT[t]}")
        if g == NG:
            a("s_mov_b64 exec, -1")
    def coss(t, g):
        r = angreg[(t, g)]
        vm.wait(("a", t, g))
        if g < NG:
            n = 4
            for p in range(2):
                a(f"v_lshlrev_b32 v{T0+2*p}, 16, v{r+p}")
                a(f"v_and_b32 v{T0+2*p+1}, s{sHi}, v{r+p}")
        else:
            n = 1
            a(f"v_lshlrev_b32 v{T0}, 16, v{r}")
        for k in range(n):
            a(f"v_mul_f32 v{T0+k}, s{sFreq}, v{T0+k}")
        for p in range((n+1)//2):
            a(f"v_cvt_pk_bf16_f32 v{T0+4+p}, v{T0+2*p}, v{T0+min(2*p+1, n-1)}")
        for k in range(n):
            if k % 2 == 0:
                a(f"v_lshlrev_b32 v{T0+k}, 16, v{T0+4+k//2}")
            else:
                a(f"v_and_b32 v{T0+k}, s{sHi}, v{T0+4+k//2}")
        for k in range(n):
            a(f"v_mul_f32 v{T0+k}, 0.15915494, v{T0+k}")
        for k in range(n):
            a(f"v_fract_f32 v{T0+k}, v{T0+k}")
        for k in range(n):
            a(f"v_cos_f32 v{T0+k}, v{T0+k}")
        a("s_nop 0")
        for p in range((n+1)//2):
            a(f"v_cvt_pk_bf16_f32 v{T0+4+p}, v{T0+2*p}, v{T0+min(2*p+1, n-1)}")
        slots = range(4*g, 4*g+4) if g < NG else [24]
        for k, s in enumerate(slots):
            if k % 2 == 0:
                a(f"v_lshl_or_b32 v{O[t](s)}, v{T0+4+k//2}, 16, v{O[t](s)}")
            else:
                a(f"v_and_or_b32 v{O[t](s)}, v{T0+4+k//2}, s{sHi}, v{O[t](s)}")
    def scan(t):
        order = [0, 2, 4, 1, 3, 5]
        C = {c: 6 + order.index(c) for c in range(6)}
        S = {c: 12 + c for c in range(6)}
        lab = f"L_{name}_scan{t}"
        a(f"""s_waitcnt lgkmcnt(0)
s_barrier
s_cmp_ge_u32 s{sWave}, 4
s_cbranch_scc1 {lab}_a
s_mul_i32 s{sTmp}, s{sWave}, {1536 - 256}
v_lshl_add_u32 v5, v0, 2, s{sTmp}""")
        for c in range(6):
            a(f"ds_read_b32 v{C[c]}, v5 offset:{CNT[t] + 256*c}")
        a("s_waitcnt lgkmcnt(0)")
        for c in range(6):
            a(f"v_add_u32_dpp v{S[c]}, v{C[c]}, v{C[c]} row_shr:1 row_mask:0xf bank_mask:0xf bound_ctrl:0")
        for sh in (2, 4, 8):
            for c in range(6):
                a(f"v_add_u32_dpp v{S[c]}, v{S[c]}, v{S[c]} row_shr:{sh} row_mask:0xf bank_mask:0xf bound_ctrl:0")
        for c in range(6):
            a(f"v_add_u32_dpp v{S[c]}, v{S[c]}, v{S[c]} row_bcast:15 row_mask:0xa bank_mask:0xf")
        for c in range(6):
            a(f"v_add_u32_dpp v{S[c]}, v{S[c]}, v{S[c]} row_bcast:31 row_mask:0xc bank_mask:0xf")
        tot = [4, 5, 6, 7, 42, 43]
        for c in range(6):
            a(f"v_readlane_b32 s{tot[c]}, v{S[c]}, 63")
        for c in range(6):
            a(f"v_sub_u32 v{S[c]}, v{S[c]}, v{C[c]}")
        for c in range(1, 6):
            a(f"s_add_u32 s{tot[c]}, s{tot[c]}, s{tot[c-1]}")
        for c in range(1, 6):
            a(f"v_add_u32 v{S[c]}, s{tot[c-1]}, v{S[c]}")
        a(f"""s_lshl_b32 s{sTmp}, s{sWave}, 2
v_mov_b32 v18, s{tot[5]}
v_mov_b32 v19, s{sTmp}
ds_write_b32 v19, v18 offset:{TOT}
s_waitcnt lgkmcnt(0)
{lab}_a:
s_barrier
s_cmp_ge_u32 s{sWave}, 4
s_cbranch_scc1 {lab}_b
v_and_b32 v19, 3, v0
v_cmp_gt_u32 vcc, s{sWave}, v19
v_lshlrev_b32 v18, 2, v19
ds_read_b32 v18, v18 offset:{TOT}
s_waitcnt lgkmcnt(0)
v_cndmask_b32 v18, 0, v18, vcc
s_nop 1
v_add_u32_dpp v18, v18, v18 quad_perm:[1,0,3,2] row_mask:0xf bank_mask:0xf
s_nop 1
v_add_u32_dpp v18, v18, v18 quad_perm:[2,3,0,1] row_mask:0xf bank_mask:0xf""")
        for c in range(6):
            a(f"v_add_u32 v{S[c]}, v18, v{S[c]}")
        for c in range(6):
            a(f"v_lshl_or_b32 v{C[c]}, v{C[c]}, 16, v{S[c]}")
            a(f"v_mad_u32_u24 v{S[c]}, v{S[c]}, 6, 2")
        for c in range(6):
            a(f"ds_write_b32 v5, v{S[c]} offset:{CNT[t] + 256*c}")
        a(f"""v_mul_u32_u24 v18, 24, v0
s_mov_b32 s{sTmp}, {t*OFF_TILE}
buffer_store_dwordx4 v[6:9], v18, s[{sOff}:{sOff+3}], s{sTmp} offen {st_off}
buffer_store_dwordx2 v[10:11], v18, s[{sOff}:{sOff+3}], s{sTmp} offen offset:16 {st_off}
s_waitcnt lgkmcnt(0)
{lab}_b:
s_barrier""")
        lg.q = []
    def scatter(t, hooks):
        D = 4
        K = lambda s: T0 + (s % (D+1))
        order = [24] + list(range(24))
        def rtn(j):
            s = order[j]
            a(f"v_and_b32 v{K(j)}, 0xffff, v{O[t](s)}")
            if s == 24: a(f"s_mov_b64 exec, s[{sTail}:{sTail+1}]")
            a(f"ds_add_rtn_u32 v{K(j)}, v{K(j)}, v{vSix} offset:{CNT[t]}")
            if s == 24: a("s_mov_b64 exec, -1")
            lg.issue(("r", j))
        for j in range(D):
            rtn(j)
        for j in range(25):
            if j + D < 25:
                rtn(j + D)
            s = order[j]
            t1, t2 = 10 + 2*(j % 2), 11 + 2*(j % 2)
            lg.wait(("r", j))
            a(f"v_and_b32 v{t1}, -4, v{K(j)}")
            a(f"v_and_b32 v{t2}, 2, v{K(j)}")
            a(f"v_mad_u32_u24 v{t2}, v{t2}, 3, v{t1}")
            if s == 24: a(f"s_mov_b64 exec, s[{sTail}:{sTail+1}]")
            a(f"ds_write_b32 v{t1}, v{I[t](s)} offset:{IMG}")
            lg.issue(("w", j))
            a(f"ds_write_b16_d16_hi v{t2}, v{O[t](s)} offset:{IMG-2}")
            lg.issue(("w2", j))
            if s == 24: a("s_mov_b64 exec, -1")
            if j in hooks:
                hooks[j]()
        a("s_waitcnt lgkmcnt(0)\ns_barrier")
        lg.q = []
    def readout(R):
        a(f"v_add_u32 v5, {3*16384}, v{vT16}")
        a(f"v_add_u32 v6, {6*16384}, v{vT16}")
        a(f"v_add_u32 v7, {9*16384}, v{vT16}")
        for j in range(10):
            base = [vT16, 5, 6, 7][j//3]
            if j == 9:
                a(f"v_cmp_gt_u32 vcc, {TREC*6//16 - 9*1024}, v0")
                a(f"s_mov_b64 exec, vcc")
            a(f"ds_read_b128 v[{R+4*j}:{R+4*j+3}], v{base} offset:{IMG + (j % 3)*16384}")
            lg.issue(("img", j))
            if j == 9:
                a("s_mov_b64 exec, -1")
    def store(t, R, j):
        lg.wait(("img", j))
        a(f"s_mov_b32 s{sTmp}, {j*16384}")
        if j == 9:
            a(f"v_cmp_gt_u32 vcc, {TREC*6//16 - 9*1024}, v0")
            a(f"s_mov_b64 exec, vcc")
        a(f"buffer_store_dwordx4 v[{R+4*j}:{R+4*j+3}], v{vT16}, s[{sRec+4*t}:{sRec+4*t+3}], s{sTmp} offen {st_rec}")
        if j == 9:
            a("s_mov_b64 exec, -1")
        vm.issue(("st", t, j))

    nxt = [lambda: pktA(3), lambda: pktA(4), lambda: pktA(5), lambda: (pktA(6), ld_idx(1, 0)), None, lambda: ld_idx(1, 1), None]
    for g in range(NG+1):
        if g == 0:
            nxt[g]()
        keys(0, g)
        coss(0, g)
        if g > 0 and nxt[g]:
            nxt[g]()
    stamp()
    scan(0)
    stamp()
    scatter(0, {3: lambda: ld_idx(1, 2), 11: lambda: ld_idx(1, 3), 19: lambda: ld_idx(1, 4)})
    stamp()
    readout(32)
    ld_idx(1, 5)
    keys(1, 0); keys(1, 1); keys(1, 2)
    ld_idx(1, 6)
    for g in range(4):
        ld_ang(1, g, 20 + 2*g)
    keys(1, 3)
    ld_ang(1, 4, 72); ld_ang(1, 5, 74); ld_ang(1, 6, 19)
    a("s_waitcnt lgkmcnt(0)"); lg.q = []
    keys(1, 4)
    store(0, 32, 0)
    keys(1, 5); keys(1, 6)
    store(0, 32, 1)
    for g in range(NG+1):
        coss(1, g)
    store(0, 32, 2)
    stamp()
    scan(1)
    stamp()
    scatter(1, {3*k: (lambda k=k: store(0, 32, 3+k)) for k in range(7)})
    stamp()
    readout(80)
    for j in range(10):
        store(1, 80, j)
    if stamps:
        a("s_waitcnt vmcnt(0)")
        stamp()
        a(f"""s_waitcnt lgkmcnt(0)
s_lshl_b32 s3, s2, 4
s_add_u32 s3, s3, s{sWave}
s_lshl_b32 s3, s3, 7
s_add_u32 s3, s3, {WS_DBG}
s_add_u32 s98, s98, s3
s_addc_u32 s99, s99, 0
v_mov_b32 v5, 0
s_mov_b64 exec, 1""")
        for k in range(nst[0]):
            a(f"v_mov_b32 v6, s{sSt+2*k}\nv_mov_b32 v7, s{sSt+2*k+1}\nglobal_store_dwordx2 v5, v[6:7], s[98:99] offset:{8*k}")
    a(f"L_{name}_end:\ns_endpgm")
    return a, LDS
```

```python
from common import *
from cfg import *

NBIN = 160; NREG = 158
MB = NREG*65536 // D_IR
assert ((D_IR-1)*MB) >> 16 < NREG

def gen_p2(name="p2_kernel", ld_rec="", ld_m="", st_part="", stamps=False, GD=3):
    a = Asm(); kernel_begin(a, name)
    CNT = 0; B32 = NBIN*4; B16 = B32 + NBIN*256; ACC = B16 + NBIN*128
    LDS = ACC + D_OB*8
    assert ACC % 16 == 0 and ACC < 65536 and LDS <= 163840
    vSeg, v2i, vRd32, vRd16, vL4, vFour, vCntA, vRst = 1, 2, 3, 4, 5, 6, 7, 8
    vOff = 10
    T0 = 14
    BUF = [32, 64]
    vCos, vRec, vG, vOld = 96, 106, 116, 124
    vA, vC = 30, 31
    sRec, sM = 4, 8
    sMB, sTmp, sWave, sIr, sHi, sIt, sQ, sOb = 12, 13, 14, 15, 16, 17, 18, 19
    sLink, sLink2, sSave, sT2, sOvf = 20, 22, 24, 26, 28
    sWs = 32
    sMask = [36, 68]
    sSt = None
    vm = SB(a, "vmcnt", 63); lg = SB(a, "lgkmcnt", 15)
    nst = [0]
    def stamp():
        if stamps:
            a(f"""s_memtime s[{sT2}:{sT2+1}]
s_mov_b64 s[{sSave}:{sSave+1}], exec
s_mov_b64 exec, 1
s_waitcnt lgkmcnt(0)
v_mov_b32 v28, s{sT2}
v_mov_b32 v29, s{sT2+1}
global_store_dwordx2 v9, v[28:29], s[{sWs}:{sWs+1}]
v_add_u32 v9, 8, v9
s_mov_b64 exec, s[{sSave}:{sSave+1}]""")
    a(f"""s_cmp_ge_u32 s2, {NQ*NOB}
s_cbranch_scc1 L_{name}_end
s_load_dwordx2 s[{sWs}:{sWs+1}], s[0:1], {KA['ws']}
s_load_dwordx2 s[{sM}:{sM+1}], s[0:1], {KA['m']}
v_lshrrev_b32 v{T0}, 6, v0
v_and_b32 v{T0+1}, 63, v0
s_bfe_u32 s{sQ}, s2, 0x20001
v_readfirstlane_b32 s{sWave}, v{T0}
s_and_b32 s{sOb}, s2, 1
s_lshl_b32 s{sOb}, s{sOb}, 5
s_lshr_b32 s{sTmp}, s2, 3
s_add_u32 s{sOb}, s{sOb}, s{sTmp}
v_bfe_u32 v{T0+2}, v0, 4, 2
v_and_b32 v{T0+3}, 15, v0
v_and_b32 v{T0+4}, 7, v0
v_bfe_u32 v{T0+5}, v0, 3, 1
v_lshl_add_u32 v{T0+6}, v{T0}, 5, v{T0+2}
v_lshl_add_u32 v{T0+7}, v{T0+4}, 2, v{T0+6}
v_mul_u32_u24 v{T0+7}, {OFF_TILE}, v{T0+7}
v_mad_u32_u24 v{T0+7}, v{T0+5}, 12, v{T0+7}
s_lshl_b32 s{sTmp}, s{sQ}, 6
s_add_u32 s{sTmp}, s{sTmp}, s{sOb}
s_mul_i32 s{sTmp}, s{sTmp}, 24
s_waitcnt lgkmcnt(0)
s_add_u32 s{sRec}, s{sWs}, {WS_OFF}
s_addc_u32 s{sRec+1}, s{sWs+1}, 0
s_mov_b32 s{sRec+2}, {NT*OFF_TILE}
s_mov_b32 s{sRec+3}, 0x00020000
buffer_load_dwordx3 v[{vOff}:{vOff+2}], v{T0+7}, s[{sRec}:{sRec+3}], s{sTmp} offen {ld_rec}
s_mov_b32 s{sM+2}, {E*8}
s_mov_b32 s{sM+3}, 0x00020000
v_mul_u32_u24 v{vSeg}, {TS}, v{T0+6}
v_mad_u32_u24 v{vSeg}, v{T0+3}, 12, v{vSeg}
v_lshlrev_b32 v{v2i}, 1, v{T0+3}
v_lshlrev_b32 v{vRd32}, 2, v0
v_lshlrev_b32 v{vRd16}, 1, v0
v_lshlrev_b32 v{vL4}, 2, v{T0+1}
v_mov_b32 v{vFour}, 4
v_lshl_add_u32 v{vCntA}, v{T0+1}, 4, v{T0}
v_mov_b32 v{vRst}, 0xffffff00
v_cmp_eq_u32 vcc, {NBIN-1}, v{vCntA}
v_lshlrev_b32 v{vCntA}, 2, v{vCntA}
v_mov_b32 v{vOff+3}, 0
v_cndmask_b32 v{vRst}, 0, v{vRst}, vcc
s_mov_b32 s{sMB}, {MB}
s_mov_b32 s{sHi}, 0xffff0000
s_mul_i32 s{sIr}, s{sQ}, {NC*D_IR*8}
s_mov_b32 s{sIt}, 0""")
    if stamps:
        a(f"""s_lshl_b32 s{sTmp}, s2, 4
s_add_u32 s{sTmp}, s{sTmp}, s{sWave}
s_lshl_b32 s{sTmp}, s{sTmp}, 9
s_add_u32 s{sTmp}, s{sTmp}, {WS_DBG + (1 << 20)}
v_mov_b32 v9, s{sTmp}""")
    stamp()
    for k in range(10):
        a(f"v_mov_b32 v{vCos+k}, 0")
    a(f"v_lshlrev_b32 v{T0}, 4, v0")
    nz = D_OB*8//16
    for j in range((nz + 1023)//1024):
        if (j+1)*1024 > nz:
            a(f"v_cmp_gt_u32 vcc, {nz - j*1024}, v0\ns_mov_b64 exec, vcc")
        a(f"ds_write_b128 v{T0}, v[{vCos}:{vCos+3}] offset:{ACC}")
        a(f"v_add_u32 v{T0}, 16384, v{T0}")
    a(f"""s_mov_b64 exec, 0x3ff
ds_write_b32 v{vCntA}, v{vRst} offset:{CNT}
s_mov_b64 exec, -1
s_waitcnt vmcnt(0)
s_mov_b32 s{sRec}, s{sWs}
s_mov_b32 s{sRec+1}, s{sWs+1}
s_mov_b32 s{sRec+2}, {NT*TS}""")
    def seg_loads(buf, reg, h):
        a(f"s_mov_b64 s[{sOvf+2*buf}:{sOvf+2*buf+1}], 0")
        for u in range(8):
            x, n, r0, ad = T0, T0+1, T0+2, T0+3+(u % 2)
            m0, m1 = sMask[buf] + 4*u, sMask[buf] + 4*u + 2
            d = BUF[buf] + 4*u
            a(f"""v_mov_b32_dpp v{x}, v{reg} row_newbcast:{u + 8*h} row_mask:0xf bank_mask:0xf
s_mov_b32 s{sTmp}, {u*4*TS}
v_lshrrev_b32 v{n}, 16, v{x}
v_and_b32 v{r0}, 1, v{x}
v_and_b32 v{ad}, 0xfffe, v{x}
v_add_u32 v{x}, v{n}, v{r0}
v_sub_u32 v{r0}, v{v2i}, v{r0}
v_cmp_lt_u32 vcc, 32, v{x}
v_cmp_lt_u32 s[{m0}:{m0+1}], v{r0}, v{n}
v_add_u32 v{r0}, 1, v{r0}
v_mad_u32_u24 v{ad}, v{ad}, 6, v{vSeg}
v_cmp_lt_u32 s[{m1}:{m1+1}], v{r0}, v{n}
s_or_b64 s[{sOvf+2*buf}:{sOvf+2*buf+1}], s[{sOvf+2*buf}:{sOvf+2*buf+1}], vcc
s_or_b64 exec, s[{m0}:{m0+1}], s[{m1}:{m1+1}]
buffer_load_dwordx3 v[{d}:{d+2}], v{ad}, s[{sRec}:{sRec+3}], s{sTmp} offen {ld_rec}
s_mov_b64 exec, -1""")
    stubs = []
    def binning(buf, reg, h):
        D = 4
        KA_ = lambda j: T0 + 2*(j % (D+1))
        KR = lambda j: T0 + 2*(j % (D+1)) + 1
        rec = lambda j: BUF[buf] + 4*(j//2) + 2*(j % 2)
        cs = lambda j: BUF[buf] + 4*(j//2) + 1
        mk = lambda j: sMask[buf] + 2*j
        def rtn(j):
            a(f"""s_mov_b64 exec, s[{mk(j)}:{mk(j)+1}]
v_mul_u32_u24_sdwa v{KA_(j)}, s{sMB}, v{rec(j)} dst_sel:DWORD dst_unused:UNUSED_PAD src0_sel:DWORD src1_sel:WORD_0
v_lshlrev_b32_sdwa v{KA_(j)}, 2, v{KA_(j)} dst_sel:DWORD dst_unused:UNUSED_PAD src0_sel:DWORD src1_sel:WORD_1
ds_add_rtn_u32 v{KR(j)}, v{KA_(j)}, v{vFour} offset:{CNT}""")
            lg.issue(("r", j))
        for j in range(D):
            rtn(j)
        for j in range(16):
            if j + D < 16:
                rtn(j + D)
            a(f"s_mov_b64 exec, s[{mk(j)}:{mk(j)+1}]")
            lg.wait(("r", j))
            lab = f"L_{name}_ov{buf}_{j}"
            wr16 = "ds_write_b16_d16_hi" if j % 2 else "ds_write_b16"
            a(f"""v_cmpx_gt_u32 vcc, 0x100, v{KR(j)}
v_lshl_add_u32 v{KA_(j)}, v{KA_(j)}, 6, v{KR(j)}
v_lshrrev_b32 v{KR(j)}, 1, v{KA_(j)}
ds_write_b32 v{KA_(j)}, v{rec(j)} offset:{B32}
{wr16} v{KR(j)}, v{cs(j)} offset:{B16}
s_andn2_b64 exec, s[{mk(j)}:{mk(j)+1}], exec
s_cbranch_scc1 {lab}
{lab}_r:""")
            lg.issue(("w", j)); lg.issue(("w2", j))
            mv = f"v_and_b32 v{vC}, s{sHi}, v{cs(j)}" if j % 2 else f"v_lshlrev_b32 v{vC}, 16, v{cs(j)}"
            stubs.append(f"""{lab}:
v_mov_b32 v{vA}, v{rec(j)}
{mv}
s_call_b64 s[{sLink}:{sLink+1}], L_{name}_ovf
s_branch {lab}_r""")
        lab = f"L_{name}_long{buf}"
        a(f"""s_mov_b64 exec, -1
s_cmp_lg_u64 s[{sOvf+2*buf}:{sOvf+2*buf+1}], 0
s_cbranch_scc1 {lab}
{lab}_r:""")
        st = f"{lab}:\n"
        for u in range(8):
            st += f"""v_mov_b32_dpp v{T0}, v{reg} row_newbcast:{u + 8*h} row_mask:0xf bank_mask:0xf
s_mov_b32 s{sTmp}, {u*4*TS}
s_call_b64 s[{sLink2}:{sLink2+1}], L_{name}_seg
"""
        st += f"s_branch {lab}_r"
        stubs.append(st)
        a("s_waitcnt lgkmcnt(0)\ns_barrier")
        lg.q = []
    def stage2(buf):
        mk = lambda b: sMask[buf] + 2*b
        sC = sMask[buf] + 20
        a(f"""s_mov_b64 exec, 0x3ff
ds_read_b32 v{T0}, v{vCntA} offset:{CNT}
ds_write_b32 v{vCntA}, v{vRst} offset:{CNT}
s_mov_b64 exec, -1""")
        lg.issue("cnt"); lg.issue("cntw")
        def rd(b):
            a(f"ds_read_b32 v{vRec+b}, v{vRd32} offset:{B32 + 4096*b}")
            lg.issue(("rec", b))
            a(f"ds_read_u16_d16_hi v{vCos+b}, v{vRd16} offset:{B16 + 2048*b}")
            lg.issue(("cos", b))
        for b in range(5):
            rd(b)
        lg.wait("cnt")
        for b in range(10):
            a(f"v_readlane_b32 s{sC+b}, v{T0}, {b}")
        for b in range(5, 10):
            rd(b)
        for b in range(10):
            a(f"v_cmp_gt_i32 s[{mk(b)}:{mk(b)+1}], s{sC+b}, v{vL4}")
        G = lambda b: vG + 2*(b % 4)
        OLD = lambda b: vOld + 2*(b % 2)
        PRV = T0 + 12
        NEW = T0 + 10
        def gather(b):
            lg.wait(("rec", b))
            a(f"""s_mov_b64 exec, s[{mk(b)}:{mk(b)+1}]
v_lshlrev_b32_sdwa v{G(b)}, 3, v{vRec+b} dst_sel:DWORD dst_unused:UNUSED_PAD src0_sel:DWORD src1_sel:WORD_0
v_lshlrev_b32_sdwa v{vRec+b}, 3, v{vRec+b} dst_sel:DWORD dst_unused:UNUSED_PAD src0_sel:DWORD src1_sel:WORD_1
buffer_load_dwordx2 v[{G(b)}:{G(b)+1}], v{G(b)}, s[{sM}:{sM+3}], s{sIr} offen {ld_m}""")
            vm.issue(("g", b))
        def check(b):
            lab = f"L_{name}_fx{buf}_{b}"
            a(f"s_mov_b64 exec, s[{mk(b)}:{mk(b)+1}]")
            lg.wait(("x", b))
            t = T0
            a(f"""v_cmpx_ne_u64 vcc, v[{PRV}:{PRV+1}], v[{OLD(b)}:{OLD(b)+1}]
s_cbranch_execz {lab}""")
            for p in range(2):
                a(f"""v_lshlrev_b32 v{t+4*p}, 16, v{PRV+p}
v_and_b32 v{t+4*p+1}, s{sHi}, v{PRV+p}
v_lshlrev_b32 v{t+4*p+2}, 16, v{OLD(b)+p}
v_and_b32 v{t+4*p+3}, s{sHi}, v{OLD(b)+p}
v_sub_f32 v{t+4*p}, v{t+4*p}, v{t+4*p+2}
v_sub_f32 v{t+4*p+1}, v{t+4*p+1}, v{t+4*p+3}
v_cvt_pk_bf16_f32 v{t+4*p}, v{t+4*p}, v{t+4*p+1}
ds_pk_add_bf16 v{vRec+b}, v{t+4*p} offset:{ACC+4*p}""")
            a(f"{lab}:")
        for b in range(GD):
            gather(b)
        for b in range(10):
            if b + GD < 10:
                gather(b + GD)
            if b > 0:
                check(b - 1)
            a(f"s_mov_b64 exec, s[{mk(b)}:{mk(b)+1}]")
            vm.wait(("g", b))
            a(f"ds_read_b64 v[{OLD(b)}:{OLD(b)+1}], v{vRec+b} offset:{ACC}")
            lg.issue(("o", b))
            t = T0
            for p in range(2):
                a(f"v_lshlrev_b32 v{t+2*p}, 16, v{G(b)+p}")
                a(f"v_and_b32 v{t+2*p+1}, s{sHi}, v{G(b)+p}")
            lg.wait(("o", b))
            for p in range(2):
                a(f"v_lshlrev_b32 v{t+4+2*p}, 16, v{OLD(b)+p}")
                a(f"v_and_b32 v{t+5+2*p}, s{sHi}, v{OLD(b)+p}")
            for k in range(4):
                a(f"v_fmac_f32 v{t+4+k}, v{t+k}, v{vCos+b}")
            a(f"v_cvt_pk_bf16_f32 v{NEW}, v{t+4}, v{t+5}")
            a(f"v_cvt_pk_bf16_f32 v{NEW+1}, v{t+6}, v{t+7}")
            a(f"ds_wrxchg_rtn_b64 v[{PRV}:{PRV+1}], v{vRec+b}, v[{NEW}:{NEW+1}] offset:{ACC}")
            lg.issue(("x", b))
        check(9)
        a(f"""s_mov_b64 exec, -1
s_add_u32 s{sIr}, s{sIr}, {D_IR*8}
s_waitcnt lgkmcnt(0)
s_barrier""")
        lg.q = []; vm.q = []
    stamp()
    seg_loads(0, vOff, 0)
    a("s_waitcnt vmcnt(0) lgkmcnt(0)\ns_barrier")
    a(f"L_{name}_loop:")
    stamp()
    seg_loads(1, vOff, 1)
    stamp()
    binning(0, vOff, 0)
    stamp()
    stage2(0)
    stamp()
    a(f"""s_cmp_eq_u32 s{sIt}, {NC//2 - 1}
s_cbranch_scc1 L_{name}_noload""")
    seg_loads(0, vOff+1, 0)
    a(f"L_{name}_noload:")
    stamp()
    binning(1, vOff, 1)
    stamp()
    stage2(1)
    a(f"""v_mov_b32 v{vOff}, v{vOff+1}
v_mov_b32 v{vOff+1}, v{vOff+2}
s_add_u32 s{sIt}, s{sIt}, 1
s_cmp_lt_u32 s{sIt}, {NC//2}
s_cbranch_scc1 L_{name}_loop""")
    stamp()
    a(f"""s_mul_i32 s{sTmp}, s{sQ}, {E*8}
s_add_u32 s{sTmp}, s{sTmp}, {WS_PART}
s_mul_i32 s{sT2}, s{sOb}, {D_OB*8}
s_add_u32 s{sTmp}, s{sTmp}, s{sT2}
s_add_u32 s{sRec}, s{sWs}, s{sTmp}
s_addc_u32 s{sRec+1}, s{sWs+1}, 0
s_sub_u32 s{sT2}, {E*8}, s{sT2}
s_min_u32 s{sRec+2}, s{sT2}, {D_OB*8}
v_lshlrev_b32 v{T0}, 4, v0""")
    nj = (nz + 1023)//1024
    for j in range(nj):
        if j:
            a(f"v_add_u32 v{T0+j}, 16384, v{T0+j-1}")
        if (j+1)*1024 > nz:
            a(f"v_cmp_gt_u32 vcc, {nz - j*1024}, v0\ns_mov_b64 exec, vcc")
        a(f"ds_read_b128 v[{32+4*j}:{35+4*j}], v{T0+j} offset:{ACC}")
        lg.issue(("d", j))
    a("s_mov_b64 exec, -1")
    for j in range(nj):
        lg.wait(("d", j))
        a(f"buffer_store_dwordx4 v[{32+4*j}:{35+4*j}], v{T0+j}, s[{sRec}:{sRec+3}], 0 offen {st_part}")
    if stamps:
        a("s_waitcnt vmcnt(0)")
        stamp()
    a(f"L_{name}_end:\ns_endpgm")
    for s in stubs:
        a(s)
    t = T0 + 10
    x, n, r0, ad, d = T0, T0+1, T0+2, T0+3, T0+4
    a(f"""L_{name}_seg:
v_lshrrev_b32 v{n}, 16, v{x}
v_and_b32 v{r0}, 1, v{x}
v_and_b32 v{ad}, 0xfffe, v{x}
v_sub_u32 v{r0}, v{v2i}, v{r0}
v_mad_u32_u24 v{ad}, v{ad}, 6, v{vSeg}
L_{name}_seg_l:
s_mov_b64 exec, -1
v_add_u32 v{r0}, 32, v{r0}
v_add_u32 v{ad}, 192, v{ad}
v_cmpx_lt_u32 vcc, v{r0}, v{n}
s_cbranch_execz L_{name}_seg_x
buffer_load_dwordx3 v[{d}:{d+2}], v{ad}, s[{sRec}:{sRec+3}], s{sTmp} offen
s_waitcnt vmcnt(0)
v_mov_b32 v{vA}, v{d}
v_lshlrev_b32 v{vC}, 16, v{d+1}
s_call_b64 s[{sLink}:{sLink+1}], L_{name}_one
s_mov_b64 exec, -1
v_add_u32 v{x}, 1, v{r0}
v_cmpx_lt_u32 vcc, v{x}, v{n}
s_cbranch_execz L_{name}_seg_l
v_mov_b32 v{vA}, v{d+2}
v_and_b32 v{vC}, s{sHi}, v{d+1}
s_call_b64 s[{sLink}:{sLink+1}], L_{name}_one
s_branch L_{name}_seg_l
L_{name}_seg_x:
s_mov_b64 exec, -1
s_nop 3
s_setpc_b64 s[{sLink2}:{sLink2+1}]
L_{name}_one:
s_mov_b64 s[{sSave}:{sSave+1}], exec
v_mul_u32_u24_sdwa v{t}, s{sMB}, v{vA} dst_sel:DWORD dst_unused:UNUSED_PAD src0_sel:DWORD src1_sel:WORD_0
v_lshlrev_b32_sdwa v{t}, 2, v{t} dst_sel:DWORD dst_unused:UNUSED_PAD src0_sel:DWORD src1_sel:WORD_1
ds_add_rtn_u32 v{t+1}, v{t}, v{vFour} offset:{CNT}
s_waitcnt lgkmcnt(0)
v_cmpx_gt_u32 vcc, 0x100, v{t+1}
v_lshl_add_u32 v{t}, v{t}, 6, v{t+1}
v_lshrrev_b32 v{t+1}, 1, v{t}
ds_write_b32 v{t}, v{vA} offset:{B32}
ds_write_b16_d16_hi v{t+1}, v{vC} offset:{B16}
s_andn2_b64 exec, s[{sSave}:{sSave+1}], exec
s_cbranch_scc1 L_{name}_ovf
s_setpc_b64 s[{sLink}:{sLink+1}]
L_{name}_ovf:
s_mov_b64 s[{sSave}:{sSave+1}], exec
v_mov_b32 v{t}, {NREG*4}
ds_add_rtn_u32 v{t+1}, v{t}, v{vFour} offset:{CNT}
ds_add_u32 v{t}, v{vFour} offset:{CNT+4}
s_waitcnt lgkmcnt(0)
v_cmpx_gt_u32 vcc, 0x200, v{t+1}
v_lshrrev_b32 v{t}, 1, v{t+1}
ds_write_b32 v{t+1}, v{vA} offset:{B32 + NREG*256}
ds_write_b16_d16_hi v{t}, v{vC} offset:{B16 + NREG*128}
s_andn2_b64 exec, s[{sSave}:{sSave+1}], exec
s_cbranch_scc0 L_{name}_ovf_x
v_lshlrev_b32_sdwa v{t}, 3, v{vA} dst_sel:DWORD dst_unused:UNUSED_PAD src0_sel:DWORD src1_sel:WORD_0
v_lshlrev_b32_sdwa v{vA}, 3, v{vA} dst_sel:DWORD dst_unused:UNUSED_PAD src0_sel:DWORD src1_sel:WORD_1
buffer_load_dwordx2 v[{t}:{t+1}], v{t}, s[{sM}:{sM+3}], s{sIr} offen
s_waitcnt vmcnt(0)
v_lshlrev_b32 v{t+2}, 16, v{t}
v_and_b32 v{t+3}, s{sHi}, v{t}
v_lshlrev_b32 v{t+4}, 16, v{t+1}
v_and_b32 v{t+5}, s{sHi}, v{t+1}
v_mul_f32 v{t+2}, v{t+2}, v{vC}
v_mul_f32 v{t+3}, v{t+3}, v{vC}
v_mul_f32 v{t+4}, v{t+4}, v{vC}
v_mul_f32 v{t+5}, v{t+5}, v{vC}
v_cvt_pk_bf16_f32 v{t}, v{t+2}, v{t+3}
v_cvt_pk_bf16_f32 v{t+1}, v{t+4}, v{t+5}
ds_pk_add_bf16 v{vA}, v{t} offset:{ACC}
ds_pk_add_bf16 v{vA}, v{t+1} offset:{ACC+4}
L_{name}_ovf_x:
s_setpc_b64 s[{sLink}:{sLink+1}]""")
    return a, LDS
```

```python
from common import *
from cfg import *
from epi import *

def gen_p3(name="p3_kernel", ld_part="", ld_m="", st_out=""):
    a = Asm(); kernel_begin(a, name)
    NWG = (E//2 + 255)//256
    a(f"""s_cmp_ge_u32 s2, {NWG}
s_cbranch_scc1 L_{name}_end
s_load_dwordx2 s[4:5], s[0:1], {KA['m']}
s_load_dwordx2 s[8:9], s[0:1], {KA['dist']}
s_load_dwordx2 s[12:13], s[0:1], {KA['ws']}
s_lshl_b32 s3, s2, 8
v_add_u32 v1, s3, v0
v_lshlrev_b32 v2, 2, v1
v_lshlrev_b32 v1, 4, v1
s_waitcnt lgkmcnt(0)
s_mov_b32 s6, {E*8}
s_mov_b32 s7, 0x00020000
s_mov_b32 s10, {E*2}
s_mov_b32 s11, 0x00020000
s_add_u32 s12, s12, {WS_PART}
s_addc_u32 s13, s13, 0
s_mov_b32 s14, {E*8}
s_mov_b32 s15, 0x00020000
buffer_load_dword v3, v2, s[8:11], 0 offen {ld_m}""")
    for q in range(NQ):
        a(f"buffer_load_dwordx4 v[{8+4*q}:{11+4*q}], v1, s[12:15], 0 offen {ld_part}")
        if q + 1 < NQ:
            a(f"s_add_u32 s12, s12, {E*8}\ns_addc_u32 s13, s13, 0")
    a(f"buffer_load_dwordx4 v[4:7], v1, s[4:7], 0 offen {ld_m}")
    epi_load_weights(a, 28)
    a(f"""s_load_dwordx2 s[8:9], s[0:1], {KA['out']}
s_mov_b32 s10, {E*8}
s_mov_b32 s11, 0x00020000""")
    epi_consts(a, 4)
    a("s_waitcnt vmcnt(1) lgkmcnt(0)")
    for e in range(2):
        for p in range(2):
            for q in range(NQ):
                src = 8 + 4*q + 2*e + p
                if q == 0:
                    a(f"v_lshlrev_b32 v{24+4*e+2*p}, 16, v{src}")
                    a(f"v_and_b32 v{25+4*e+2*p}, s6, v{src}")
                else:
                    a(f"v_lshlrev_b32 v32, 16, v{src}")
                    a(f"v_and_b32 v33, s6, v{src}")
                    a(f"v_add_f32 v{24+4*e+2*p}, v{24+4*e+2*p}, v32")
                    a(f"v_add_f32 v{25+4*e+2*p}, v{25+4*e+2*p}, v33")
    a("v_lshlrev_b32 v8, 16, v3\nv_and_b32 v9, s6, v3\ns_waitcnt vmcnt(0)")
    for e in range(2):
        epi_compute(a, 28, 24+4*e, 4+2*e, 8+e, 32, 12+2*e, 4)
    a(f"""buffer_store_dwordx4 v[12:15], v1, s[8:11], 0 offen {st_out}
L_{name}_end:
s_endpgm""")
    return a, NWG
```

```python
import sys, json
from common import *
from cfg import *
from p1 import gen_p1
from p2 import gen_p2
from p3 import gen_p3
def build(path, **kw):
    g = lambda k, d="": kw.get(k, d)
    a1, l1 = gen_p1(ld_in=g("p1_ld", "nt"), st_rec=g("p1_st"), st_off=g("p1_sto"), stamps=g("stamps", False))
    a2, l2 = gen_p2(ld_rec=g("p2_ld"), ld_m=g("p2_ldm"), st_part=g("p2_st"), stamps=g("stamps", False), GD=g("GD", 3))
    a3, n3 = gen_p3(ld_part=g("p3_ld"), ld_m=g("p3_ldm"), st_out=g("p3_st"))
    txt = assemble_file([("p1_kernel", NT//2, 1024, l1), ("p2_kernel", NQ*NOB, 1024, l2), ("p3_kernel", n3, 256, 0)],
        [("p1_kernel", a1, 128, 102), ("p2_kernel", a2, 128, 102), ("p3_kernel", a3, 52, 102)])
    open(path, "w").write(txt)
if __name__ == "__main__":
    kw = json.loads(sys.argv[2]) if len(sys.argv) > 2 else {}
    build(sys.argv[1], **kw)
```

```python
from common import E, T
NT = 512
TREC = 25024
TS = 150144
NQ = 4
NC = 5
NOB = 64
NKEY = NQ*NC*NOB
D_OB, M_OB = 12512, 343268
D_IR, M_IR = 40012, 107342
RB, MBIN = 100, 655
NREG = (((D_IR-1)*MBIN) >> 16) + 1
assert all(0 <= il - ((il*MBIN) >> 16)*RB < 128 for il in range(D_IR))
WS_REC = 0
WS_OFF = 80 << 20
WS_PART = 84 << 20
WS_WT = 83 << 20
WS_FLAG = WS_WT + 4096
WS_DBG = 120 << 20
OFF_TILE = NKEY*4

class SB:
    def __init__(self, a, name, maxn):
        self.a, self.name, self.maxn, self.q = a, name, maxn, []
    def issue(self, tag):
        self.q.append(tag)
    def wait(self, tag):
        if tag not in self.q:
            return
        i = len(self.q) - 1 - self.q[::-1].index(tag)
        n = len(self.q) - 1 - i
        n = min(n, self.maxn)
        self.a(f"s_waitcnt {self.name}({n})")
        self.q = self.q[len(self.q)-n:] if n else []
    def drain(self):
        self.a(f"s_waitcnt {self.name}(0)")
        self.q = []
```

```python
from common import *
from cfg import *

def gen_p1(name="p1_kernel", ld_in="nt", st_rec="", st_off="", stamps=False, warm=True):
    a = Asm(); kernel_begin(a, name)
    CNT = [0, NKEY*4]; TOT = NKEY*8; IMG = TOT + 16
    LDS = IMG + TREC*6
    NG = 6; TAIL = TREC - NG*4096
    I = [lambda s: 32+s if s < 24 else 28, lambda s: 80+s if s < 24 else 30]
    O = [lambda s: 56+s if s < 24 else 29, lambda s: 104+s if s < 24 else 31]
    vT16, vT8, vOne, vSix = 1, 2, 3, 4
    T0 = 5
    sIn, sOut, sAng, sRec, sOff = 8, 12, 16, 20, 28
    sMob, sNob, sMir, sNir, sFreq, sHi, sTmp, sWave = 32, 33, 34, 35, 36, 37, 38, 39
    sTail = 40
    sRB, sSg, sTop = 96, 97, 95
    sSt = 44
    vm = SB(a, "vmcnt", 63); lg = SB(a, "lgkmcnt", 15)
    nst = [0]
    def stamp(op="s_memtime"):
        if stamps:
            a(f"{op} s[{sSt+2*nst[0]}:{sSt+2*nst[0]+1}]")
            nst[0] += 1
    a(f"""s_cmp_ge_u32 s2, {NT//2}
s_cbranch_scc1 L_{name}_end
s_load_dwordx4 s[4:7], s[0:1], {KA['idx_in']}
s_load_dwordx2 s[40:41], s[0:1], {KA['angle']}
s_load_dwordx2 s[42:43], s[0:1], {KA['freq']}
s_load_dwordx2 s[36:37], s[0:1], {KA['ws']}
v_lshlrev_b32 v{vT16}, 4, v0
v_lshlrev_b32 v{vT8}, 3, v0
s_mul_i32 s3, s2, {2*TREC*4}
s_waitcnt lgkmcnt(0)""")
    stamp("s_memrealtime")
    stamp()
    for (d, b) in ((sIn, 4), (sOut, 6)):
        a(f"""s_add_u32 s{d}, s{b}, s3
s_addc_u32 s{d+1}, s{b+1}, 0
s_mov_b32 s{d+2}, {2*TREC*4}
s_mov_b32 s{d+3}, 0x00020000""")
    a(f"""s_lshr_b32 s3, s3, 1
s_add_u32 s{sAng}, s40, s3
s_addc_u32 s{sAng+1}, s41, 0
s_mov_b32 s{sAng+2}, {2*TREC*2}
s_mov_b32 s{sAng+3}, 0x00020000""")
    angreg = {}
    def ld_idx(t, g):
        if g < NG:
            a(f"s_mov_b32 s{sTmp}, {t*TREC*4 + g*16384}")
            a(f"buffer_load_dwordx4 v[{O[t](4*g)}:{O[t](4*g)+3}], v{vT16}, s[{sOut}:{sOut+3}], s{sTmp} offen {ld_in}")
            vm.issue(("o", t, g))
            a(f"buffer_load_dwordx4 v[{I[t](4*g)}:{I[t](4*g)+3}], v{vT16}, s[{sIn}:{sIn+3}], s{sTmp} offen {ld_in}")
            vm.issue(("i", t, g))
        else:
            a(f"s_mov_b32 s{sTmp}, {t*TREC*4 + NG*16384}")
            a(f"v_lshlrev_b32 v{I[t](24)}, 2, v0")
            a(f"v_cndmask_b32 v{I[t](24)}, -16, v{I[t](24)}, s[{sTail}:{sTail+1}]")
            a(f"buffer_load_dword v{O[t](24)}, v{I[t](24)}, s[{sOut}:{sOut+3}], s{sTmp} offen {ld_in}")
            vm.issue(("o", t, g))
            a(f"buffer_load_dword v{I[t](24)}, v{I[t](24)}, s[{sIn}:{sIn+3}], s{sTmp} offen {ld_in}")
            vm.issue(("i", t, g))
    def ld_ang(t, g, r):
        angreg[(t, g)] = r
        if g < NG:
            a(f"s_mov_b32 s{sTmp}, {t*TREC*2 + g*8192}")
            a(f"buffer_load_dwordx2 v[{r}:{r+1}], v{vT8}, s[{sAng}:{sAng+3}], s{sTmp} offen {ld_in}")
        else:
            a(f"s_mov_b32 s{sTmp}, {t*TREC*2 + NG*8192}")
            a(f"v_lshlrev_b32 v{r}, 1, v0")
            a(f"v_cndmask_b32 v{r}, -16, v{r}, s[{sTail}:{sTail+1}]")
            a(f"buffer_load_ushort v{r}, v{r}, s[{sAng}:{sAng+3}], s{sTmp} offen {ld_in}")
        vm.issue(("a", t, g))
    def pktA(g):
        ld_idx(0, g)
        ld_ang(0, g, 20 + 2*(g % 4) if g < NG else 19)
    pktA(0); pktA(1); pktA(2)
    if warm:
        a(f"""s_load_dwordx2 s[{sRec}:{sRec+1}], s[0:1], {KA['m']}
s_mul_i32 s3, s2, 196
v_add_lshl_u32 v18, v0, s3, 7
s_mov_b32 s{sRec+2}, {E*8}
s_mov_b32 s{sRec+3}, 0x00020000
v_cmp_gt_u32 vcc, 196, v0
s_mov_b64 exec, vcc
s_waitcnt lgkmcnt(0)
buffer_load_dword v18, v18, s[{sRec}:{sRec+3}], 0 offen
s_mov_b64 exec, -1""")
        vm.issue("warm")
    a(f"""s_load_dword s{sFreq+6}, s[42:43], 0
s_mul_i32 s3, s2, {2*TS}
s_add_u32 s{sRec}, s36, s3
s_addc_u32 s{sRec+1}, s37, 0
s_mov_b32 s{sRec+2}, {TREC*6}
s_mov_b32 s{sRec+3}, 0x00020000
s_add_u32 s{sRec+4}, s{sRec}, {TS}
s_addc_u32 s{sRec+5}, s{sRec+1}, 0
s_mov_b32 s{sRec+6}, {TREC*6}
s_mov_b32 s{sRec+7}, 0x00020000
s_mul_i32 s3, s2, {2*OFF_TILE}
s_add_u32 s3, s3, {WS_OFF}
s_add_u32 s{sOff}, s36, s3
s_addc_u32 s{sOff+1}, s37, 0
s_mov_b32 s{sOff+2}, {2*OFF_TILE}
s_mov_b32 s{sOff+3}, 0x00020000""")
    if stamps:
        a(f"s_mov_b64 s[98:99], s[36:37]")
    a(f"""s_mov_b32 s{sMob}, {M_OB}
s_mov_b32 s{sNob}, {-D_OB & 0xffffffff}
s_mov_b32 s{sMir}, {M_IR}
s_mov_b32 s{sNir}, {-D_IR & 0xffffffff}
s_mov_b32 s{sHi}, 0xffff0000
s_mov_b32 s{sRB}, {RB}
s_mov_b32 s{sSg}, 0x04000400
s_mov_b32 s{sTop}, 0xffe00000
v_mov_b32 v{vOne}, 1
v_mov_b32 v{vSix}, 6
v_lshrrev_b32 v{T0}, 6, v0
v_mov_b32 v6, 0
v_mov_b32 v7, 0
v_mov_b32 v8, 0
v_mov_b32 v9, 0
v_readfirstlane_b32 s{sWave}, v{T0}
s_waitcnt lgkmcnt(0)
s_lshl_b32 s{sFreq}, s{sFreq+6}, 16
v_cmp_gt_u32 vcc, {2*NKEY//4}, v0
s_and_saveexec_b64 s[{sTail}:{sTail+1}], vcc
ds_write_b128 v{vT16}, v[6:9]
s_mov_b64 exec, -1
s_movk_i32 s{sTmp}, {TAIL}
v_cmp_gt_u32 s[{sTail}:{sTail+1}], s{sTmp}, v0
s_waitcnt lgkmcnt(0)
s_barrier""")
    def keys(t, g):
        slots = range(4*g, 4*g+4) if g < NG else [24]
        vm.wait(("o", t, g))
        for k, s in enumerate(slots):
            a(f"v_mul_hi_u32_u24 v{T0+k}, s{sMob}, v{O[t](s)}")
        for k, s in enumerate(slots):
            a(f"v_mad_i32_i24 v{O[t](s)}, v{T0+k}, s{sNob}, v{O[t](s)}")
        vm.wait(("i", t, g))
        for k, s in enumerate(slots):
            a(f"v_mul_hi_u32_u24 v{T0+4+k}, s{sMir}, v{I[t](s)}")
        for k, s in enumerate(slots):
            a(f"v_mad_i32_i24 v{I[t](s)}, v{T0+4+k}, s{sNir}, v{I[t](s)}")
            a(f"v_lshl_add_u32 v{T0+k}, v{T0+4+k}, 6, v{T0+k}")
        for k, s in enumerate(slots):
            a(f"v_mul_u32_u24 v{T0+4+k}, {MBIN}, v{I[t](s)}")
            a(f"v_lshl_add_u32 v{I[t](s)}, v{O[t](s)}, 7, v{I[t](s)}")
            a(f"v_lshlrev_b32 v{O[t](s)}, 2, v{T0+k}")
        if g == NG:
            a(f"s_mov_b64 exec, s[{sTail}:{sTail+1}]")
        for k, s in enumerate(slots):
            a(f"ds_add_u32 v{O[t](s)}, v{vOne} offset:{CNT[t]}")
        if g == NG:
            a("s_mov_b64 exec, -1")
        for k, s in enumerate(slots):
            a(f"v_mul_u32_u24_sdwa v{T0+k}, s{sRB}, v{T0+4+k} dst_sel:DWORD dst_unused:UNUSED_PAD src0_sel:DWORD src1_sel:WORD_1")
            a(f"v_and_or_b32 v{O[t](s)}, v{T0+4+k}, s{sHi}, v{O[t](s)}")
        for k, s in enumerate(slots):
            a(f"v_sub_u32 v{I[t](s)}, v{I[t](s)}, v{T0+k}")
    def coss(t, g):
        r = angreg[(t, g)]
        vm.wait(("a", t, g))
        n = 4 if g < NG else 1
        np_ = (n+1)//2
        def unpack():
            for k in range(n):
                if k % 2 == 0:
                    a(f"v_lshlrev_b32 v{T0+k}, 16, v{r+k//2}")
                else:
                    a(f"v_and_b32 v{T0+k}, 0xffff0000, v{r+k//2}")
        lab = f"L_{name}_f{t}_{g}"
        a(f"s_cmp_eq_u32 s{sFreq}, 1.0\ns_cbranch_scc1 {lab}")
        unpack()
        for k in range(n):
            a(f"v_mul_f32 v{T0+k}, s{sFreq}, v{T0+k}")
        for p in range(np_):
            a(f"v_cvt_pk_bf16_f32 v{r+p}, v{T0+2*p}, v{T0+min(2*p+1, n-1)}")
        a(f"{lab}:")
        unpack()
        for k in range(n):
            a(f"v_mul_f32 v{T0+k}, 0.15915494, v{T0+k}")
        for k in range(n):
            a(f"v_fract_f32 v{T0+k}, v{T0+k}")
        for k in range(n):
            a(f"v_cos_f32 v{T0+k}, v{T0+k}")
        if n == 1:
            a("s_nop 0")
        for k in range(n):
            a(f"v_mul_f32 v{T0+k}, 0x03800000, v{T0+k}")
        for p in range(np_):
            a(f"v_cvt_pk_bf16_f32 v{T0+4+p}, v{T0+2*p}, v{T0+min(2*p+1, n-1)}")
        for p in range(np_):
            a(f"v_lshrrev_b32 v{T0+p}, 5, v{T0+4+p}")
        for p in range(np_):
            a(f"v_bfi_b32 v{T0+4+p}, s{sSg}, v{T0+p}, v{T0+4+p}")
        slots = list(range(4*g, 4*g+4)) if g < NG else [24]
        for k, s in enumerate(slots):
            if k % 2 == 0:
                a(f"v_lshl_or_b32 v{I[t](s)}, v{T0+4+k//2}, 21, v{I[t](s)}")
            else:
                a(f"v_lshlrev_b32 v{T0+k//2}, 5, v{T0+4+k//2}")
        for k, s in enumerate(slots):
            if k % 2 == 1:
                a(f"v_and_or_b32 v{I[t](s)}, v{T0+k//2}, s{sTop}, v{I[t](s)}")
    def scan(t):
        C = {c: 6 + c for c in range(NC)}
        S = {c: 12 + c for c in range(NC)}
        lab = f"L_{name}_scan{t}"
        a(f"""s_waitcnt lgkmcnt(0)
s_barrier
s_cmp_ge_u32 s{sWave}, 4
s_cbranch_scc1 {lab}_a
s_mul_i32 s{sTmp}, s{sWave}, {NC*256 - 256}
v_lshl_add_u32 v5, v0, 2, s{sTmp}""")
        for c in range(NC):
            a(f"ds_read_b32 v{C[c]}, v5 offset:{CNT[t] + 256*c}")
        a("s_waitcnt lgkmcnt(0)")
        for c in range(NC):
            a(f"v_add_u32_dpp v{S[c]}, v{C[c]}, v{C[c]} row_shr:1 row_mask:0xf bank_mask:0xf bound_ctrl:0")
        for sh in (2, 4, 8):
            for c in range(NC):
                a(f"v_add_u32_dpp v{S[c]}, v{S[c]}, v{S[c]} row_shr:{sh} row_mask:0xf bank_mask:0xf bound_ctrl:0")
        for c in range(NC):
            a(f"v_add_u32_dpp v{S[c]}, v{S[c]}, v{S[c]} row_bcast:15 row_mask:0xa bank_mask:0xf")
        for c in range(NC):
            a(f"v_add_u32_dpp v{S[c]}, v{S[c]}, v{S[c]} row_bcast:31 row_mask:0xc bank_mask:0xf")
        tot = [4, 5, 6, 7, 42, 43]
        for c in range(NC):
            a(f"v_readlane_b32 s{tot[c]}, v{S[c]}, 63")
        for c in range(NC):
            a(f"v_sub_u32 v{S[c]}, v{S[c]}, v{C[c]}")
        for c in range(1, NC):
            a(f"s_add_u32 s{tot[c]}, s{tot[c]}, s{tot[c-1]}")
        for c in range(1, NC):
            a(f"v_add_u32 v{S[c]}, s{tot[c-1]}, v{S[c]}")
        a(f"""s_lshl_b32 s{sTmp}, s{sWave}, 2
v_mov_b32 v18, s{tot[NC-1]}
v_mov_b32 v19, s{sTmp}
ds_write_b32 v19, v18 offset:{TOT}
s_waitcnt lgkmcnt(0)
{lab}_a:
s_barrier
s_cmp_ge_u32 s{sWave}, 4
s_cbranch_scc1 {lab}_b
v_and_b32 v19, 3, v0
v_cmp_gt_u32 vcc, s{sWave}, v19
v_lshlrev_b32 v18, 2, v19
ds_read_b32 v18, v18 offset:{TOT}
s_waitcnt lgkmcnt(0)
v_cndmask_b32 v18, 0, v18, vcc
s_nop 1
v_add_u32_dpp v18, v18, v18 quad_perm:[1,0,3,2] row_mask:0xf bank_mask:0xf
s_nop 1
v_add_u32_dpp v18, v18, v18 quad_perm:[2,3,0,1] row_mask:0xf bank_mask:0xf""")
        for c in range(NC):
            a(f"v_add_u32 v{S[c]}, v18, v{S[c]}")
        for c in range(NC):
            a(f"v_lshl_or_b32 v{C[c]}, v{C[c]}, 16, v{S[c]}")
            a(f"v_mad_u32_u24 v{S[c]}, v{S[c]}, 6, 2")
        for c in range(NC):
            a(f"ds_write_b32 v5, v{S[c]} offset:{CNT[t] + 256*c}")
        a(f"""v_mul_u32_u24 v18, {4*NC}, v0
s_mov_b32 s{sTmp}, {t*OFF_TILE}
buffer_store_dwordx4 v[6:9], v18, s[{sOff}:{sOff+3}], s{sTmp} offen {st_off}
{'buffer_store_dwordx2 v[10:11]' if NC == 6 else 'buffer_store_dword v10'}, v18, s[{sOff}:{sOff+3}], s{sTmp} offen offset:16 {st_off}
s_waitcnt lgkmcnt(0)
{lab}_b:
s_barrier""")
        lg.q = []
    def scatter(t, hooks):
        D = 4
        K = lambda s: T0 + (s % (D+1))
        order = [24] + list(range(24))
        def rtn(j):
            s = order[j]
            a(f"v_and_b32 v{K(j)}, 0xffff, v{O[t](s)}")
            if s == 24: a(f"s_mov_b64 exec, s[{sTail}:{sTail+1}]")
            a(f"ds_add_rtn_u32 v{K(j)}, v{K(j)}, v{vSix} offset:{CNT[t]}")
            if s == 24: a("s_mov_b64 exec, -1")
            lg.issue(("r", j))
        for j in range(D):
            rtn(j)
        for j in range(25):
            if j + D < 25:
                rtn(j + D)
            s = order[j]
            t1, t2 = 10 + 2*(j % 2), 11 + 2*(j % 2)
            lg.wait(("r", j))
            a(f"v_and_b32 v{t1}, -4, v{K(j)}")
            a(f"v_and_b32 v{t2}, 2, v{K(j)}")
            a(f"v_mad_u32_u24 v{t2}, v{t2}, 3, v{t1}")
            if s == 24: a(f"s_mov_b64 exec, s[{sTail}:{sTail+1}]")
            a(f"ds_write_b32 v{t1}, v{I[t](s)} offset:{IMG}")
            lg.issue(("w", j))
            a(f"ds_write_b16_d16_hi v{t2}, v{O[t](s)} offset:{IMG-2}")
            lg.issue(("w2", j))
            if s == 24: a("s_mov_b64 exec, -1")
            if j in hooks:
                hooks[j]()
        a("s_waitcnt lgkmcnt(0)\ns_barrier")
        lg.q = []
    def readout(R):
        a(f"v_add_u32 v5, {3*16384}, v{vT16}")
        a(f"v_add_u32 v6, {6*16384}, v{vT16}")
        a(f"v_add_u32 v7, {9*16384}, v{vT16}")
        for j in range(10):
            base = [vT16, 5, 6, 7][j//3]
            if j == 9:
                a(f"v_cmp_gt_u32 vcc, {TREC*6//16 - 9*1024}, v0")
                a(f"s_mov_b64 exec, vcc")
            a(f"ds_read_b128 v[{R+4*j}:{R+4*j+3}], v{base} offset:{IMG + (j % 3)*16384}")
            lg.issue(("img", j))
            if j == 9:
                a("s_mov_b64 exec, -1")
    def store(t, R, j):
        lg.wait(("img", j))
        a(f"s_mov_b32 s{sTmp}, {j*16384}")
        if j == 9:
            a(f"v_cmp_gt_u32 vcc, {TREC*6//16 - 9*1024}, v0")
            a(f"s_mov_b64 exec, vcc")
        a(f"buffer_store_dwordx4 v[{R+4*j}:{R+4*j+3}], v{vT16}, s[{sRec+4*t}:{sRec+4*t+3}], s{sTmp} offen {st_rec}")
        if j == 9:
            a("s_mov_b64 exec, -1")
        vm.issue(("st", t, j))

    nxt = [lambda: pktA(3), lambda: pktA(4), lambda: pktA(5), lambda: (pktA(6), ld_idx(1, 0)), None, lambda: ld_idx(1, 1), None]
    for g in range(NG+1):
        if g == 0:
            nxt[g]()
        keys(0, g)
        coss(0, g)
        if g > 0 and nxt[g]:
            nxt[g]()
    stamp()
    scan(0)
    stamp()
    scatter(0, {3: lambda: ld_idx(1, 2), 11: lambda: ld_idx(1, 3), 19: lambda: ld_idx(1, 4)})
    stamp()
    readout(32)
    ld_idx(1, 5)
    keys(1, 0); keys(1, 1); keys(1, 2)
    ld_idx(1, 6)
    for g in range(4):
        ld_ang(1, g, 20 + 2*g)
    keys(1, 3)
    ld_ang(1, 4, 72); ld_ang(1, 5, 74); ld_ang(1, 6, 19)
    a("s_waitcnt lgkmcnt(0)"); lg.q = []
    keys(1, 4)
    store(0, 32, 0)
    keys(1, 5); keys(1, 6)
    store(0, 32, 1)
    for g in range(NG+1):
        coss(1, g)
    store(0, 32, 2)
    stamp()
    scan(1)
    stamp()
    scatter(1, {3*k: (lambda k=k: store(0, 32, 3+k)) for k in range(7)})
    stamp()
    a(f"""s_or_b32 s{sTmp}, s2, s{sWave}
s_cbranch_scc1 L_{name}_w0
s_load_dwordx8 s[8:15], s[0:1], {KA['w_rbf']}
v_lshlrev_b32 v76, 1, v0
s_mov_b32 exec_hi, 0
s_waitcnt lgkmcnt(0)
global_load_ushort v72, v76, s[8:9]
global_load_ushort v73, v76, s[10:11]
s_mov_b32 exec_lo, 0xffff
global_load_ushort v74, v76, s[12:13]
global_load_ushort v75, v76, s[14:15]
s_mov_b64 exec, -1
L_{name}_w0:""")
    readout(80)
    for j in range(10):
        store(1, 80, j)
    a(f"""s_or_b32 s{sTmp}, s2, s{sWave}
s_cbranch_scc1 L_{name}_w1
v_and_b32 v76, 3, v0
v_lshrrev_b32 v77, 2, v0
v_mul_u32_u24 v76, 24, v76
v_add_lshl_u32 v76, v76, v77, 1
s_add_u32 s8, s{sRec}, {WS_WT}
s_addc_u32 s9, s{sRec+1}, 0
s_mov_b32 exec_hi, 0
s_waitcnt vmcnt(10)
global_store_short v76, v72, s[8:9] offset:32
global_store_short v76, v73, s[8:9] offset:16
s_mov_b32 exec_lo, 0xffff
global_store_short v76, v74, s[8:9]
global_store_short v76, v75, s[8:9] offset:8
s_mov_b64 exec, -1
L_{name}_w1:""")
    if stamps:
        a("s_waitcnt vmcnt(0)")
        stamp()
        stamp("s_memrealtime")
        a(f"""s_waitcnt lgkmcnt(0)
s_lshl_b32 s3, s2, 4
s_add_u32 s3, s3, s{sWave}
s_lshl_b32 s3, s3, 7
s_add_u32 s3, s3, {WS_DBG}
s_add_u32 s98, s98, s3
s_addc_u32 s99, s99, 0
v_mov_b32 v5, 0
s_mov_b64 exec, 1""")
        for k in range(nst[0]):
            a(f"v_mov_b32 v6, s{sSt+2*k}\nv_mov_b32 v7, s{sSt+2*k+1}\nglobal_store_dwordx2 v5, v[6:7], s[98:99] offset:{8*k}")
    a(f"L_{name}_end:\ns_endpgm")
    return a, LDS
```

```python
from common import *
from cfg import *

MF = "v_mfma_f32_4x4x4_16b_bf16"
def rbf_pack(a, vD, e, t, pk, sC):
    for p in range(4):
        a(f"v_pk_add_f32 v[{t+2*p}:{t+2*p+1}], v[{vD}:{vD+1}], s[{sC+2*p}:{sC+2*p+1}] op_sel:[{e},0] op_sel_hi:[{e},1] neg_lo:[0,1] neg_hi:[0,1]")
    def rnd():
        for p in range(4):
            a(f"v_cvt_pk_bf16_f32 v{pk+p}, v{t+2*p}, v{t+2*p+1}")
    def unpack():
        for p in range(4):
            a(f"v_lshlrev_b32 v{t+2*p}, 16, v{pk+p}")
            a(f"v_and_b32 v{t+2*p+1}, 0xffff0000, v{pk+p}")
    rnd(); unpack()
    for r in range(8):
        a(f"v_mul_f32 v{t+r}, v{t+r}, v{t+r}")
    rnd(); unpack()
    for r in range(8):
        a(f"v_mul_f32 v{t+r}, 0xc1200000, v{t+r}")
    rnd(); unpack()
    for r in range(8):
        a(f"v_mul_f32 v{t+r}, 0x3fb8aa3b, v{t+r}")
    for r in range(8):
        a(f"v_exp_f32 v{t+r}, v{t+r}")
    rnd()

def gen_p3(name="p3_kernel", ld_part="", ld_m="", st_out="", stamps=False, BLK=256):
    a = Asm(); kernel_begin(a, name)
    NWG = (E//2 + BLK - 1)//BLK
    sC = 24
    vM, vP, vW = 4, 8, 24
    WD, WU, WS, WR = vW, vW+2, vW+4, vW+8
    vD = 2; t = 36; pk = [44, 48]
    a(f"""s_cmp_ge_u32 s2, {NWG}
s_cbranch_scc1 L_{name}_end
s_load_dwordx2 s[8:9], s[0:1], {KA['dist']}
s_load_dwordx2 s[12:13], s[0:1], {KA['ws']}
s_load_dwordx2 s[4:5], s[0:1], {KA['m']}
s_load_dwordx2 s[20:21], s[0:1], {KA['centers']}
s_load_dwordx2 s[16:17], s[0:1], {KA['out']}
s_mul_i32 s3, s2, {BLK}
v_add_u32 v1, s3, v0
v_lshlrev_b32 v2, 2, v1
v_lshlrev_b32 v1, 4, v1
v_and_b32 v36, 3, v0
v_mul_u32_u24 v36, 48, v36
s_mov_b32 s6, {E*8}
s_mov_b32 s7, 0x00020000
s_mov_b32 s10, {E*2}
s_mov_b32 s11, 0x00020000
s_mov_b32 s14, {E*8}
s_mov_b32 s15, 0x00020000
s_mov_b32 s18, {E*8}
s_mov_b32 s19, 0x00020000
s_waitcnt lgkmcnt(0)
buffer_load_dword v3, v2, s[8:11], 0 offen {ld_m}
s_load_dwordx4 s[20:23], s[20:21], 0
s_add_u32 s8, s12, {WS_WT}
s_addc_u32 s9, s13, 0
s_add_u32 s12, s12, {WS_PART}
s_addc_u32 s13, s13, 0""")
    for q in range(NQ):
        a(f"buffer_load_dwordx4 v[{vP+4*q}:{vP+4*q+3}], v1, s[12:15], 0 offen {ld_part}")
        if q + 1 < NQ:
            a(f"s_add_u32 s12, s12, {E*8}\ns_addc_u32 s13, s13, 0")
    a(f"buffer_load_dwordx4 v[{vM}:{vM+3}], v1, s[4:7], 0 offen {ld_m}")
    for k in range(3):
        a(f"global_load_dwordx4 v[{vW+4*k}:{vW+4*k+3}], v36, s[8:9] offset:{16*k}")
    if stamps:
        a("s_memrealtime s[40:41]")
    a("s_waitcnt lgkmcnt(0)")
    for r in range(8):
        a(f"s_lshl_b32 s{sC+r}, s{20+r//2}, 16" if r % 2 == 0 else f"s_and_b32 s{sC+r}, s{20+r//2}, 0xffff0000")
    a(f"""s_waitcnt vmcnt(8)
v_lshlrev_b32 v2, 16, v3
v_and_b32 v3, 0xffff0000, v3""")
    for e in range(2):
        rbf_pack(a, vD, e, t, pk[e], sC)
    R = [36, 40]; G = [52, 56]; A = [44, 48]
    a("s_waitcnt vmcnt(0)\ns_nop 0")
    for h in range(2):
        for e in range(2):
            for (D, W) in ((R[e], WS), (G[e], WR)):
                c = "0" if h == 0 else f"v[{D}:{D+3}]"
                a(f"{MF} v[{D}:{D+3}], v[{W+2*h}:{W+2*h+1}], v[{pk[e]+2*h}:{pk[e]+2*h+1}], {c}")
    U = [8, 12]; MM = [16, 20]
    for q in range(NQ):
        for e in range(2):
            c = "0" if q == 0 else f"v[{A[e]}:{A[e]+3}]"
            a(f"{MF} v[{A[e]}:{A[e]+3}], v[{WD}:{WD+1}], v[{vP+4*q+2*e}:{vP+4*q+2*e+1}], {c}")
        if q + 1 < NQ:
            a("s_nop 0")
    for e in range(2):
        a(f"v_cvt_pk_bf16_f32 v{60+2*e}, v{G[e]}, v{G[e]+1}")
        a(f"v_cvt_pk_bf16_f32 v{61+2*e}, v{G[e]+2}, v{G[e]+3}")
    for e in range(2):
        for p in range(2):
            a(f"v_lshlrev_b32 v{G[e]+2*p}, 16, v{60+2*e+p}")
            a(f"v_and_b32 v{G[e]+2*p+1}, 0xffff0000, v{60+2*e+p}")
    for e in range(2):
        for j in range(4):
            a(f"v_mul_f32 v{A[e]+j}, v{A[e]+j}, v{R[e]+j}")
    for e in range(2):
        a(f"v_cvt_pk_bf16_f32 v{60+2*e}, v{A[e]}, v{A[e]+1}")
        a(f"v_cvt_pk_bf16_f32 v{61+2*e}, v{A[e]+2}, v{A[e]+3}")
    a(f"v_lshlrev_b32 v{MM[0]}, 16, v{vM}\nv_and_b32 v{MM[0]+1}, 0xffff0000, v{vM}")
    for e in range(2):
        a(f"{MF} v[{U[e]}:{U[e]+3}], v[{WU}:{WU+1}], v[{60+2*e}:{61+2*e}], 0")
    for k in range(1, 4):
        a(f"v_lshlrev_b32 v{MM[0]+2*k}, 16, v{vM+k}\nv_and_b32 v{MM[0]+2*k+1}, 0xffff0000, v{vM+k}")
    for e in range(2):
        for j in range(4):
            a(f"v_fmac_f32 v{MM[e]+j}, v{U[e]+j}, v{G[e]+j}")
    for k in range(4):
        a(f"v_cvt_pk_bf16_f32 v{vM+k}, v{MM[0]+2*k}, v{MM[0]+2*k+1}")
    a(f"buffer_store_dwordx4 v[{vM}:{vM+3}], v1, s[16:19], 0 offen {st_out}")
    if stamps:
        a(f"""s_waitcnt vmcnt(0)
s_memrealtime s[42:43]
s_load_dwordx2 s[12:13], s[0:1], {KA['ws']}
s_waitcnt lgkmcnt(0)
v_mov_b32 v52, s40
v_mov_b32 v53, s41
v_mov_b32 v54, s42
v_mov_b32 v55, s43
s_lshl_b32 s3, s2, 4
s_add_u32 s3, s3, {WS_DBG + (4 << 20)}
v_mov_b32 v2, s3
v_cmp_eq_u32 vcc, 0, v0
s_mov_b64 exec, vcc
global_store_dwordx4 v2, v[52:55], s[12:13]""")
    a(f"""L_{name}_end:
s_endpgm""")
    return a, NWG, BLK
```

```python
import sys, json
from common import *
from cfg import *
from p1 import gen_p1
import importlib
from p3 import gen_p3
def build(path, **kw):
    gen_p2 = importlib.import_module(kw.get('p2mod', 'p2_v8')).gen_p2
    g = lambda k, d="": kw.get(k, d)
    a1, l1 = gen_p1(ld_in=g("p1_ld", "nt"), st_rec=g("p1_st"), st_off=g("p1_sto"), stamps=g("stamps", False), **kw.get("p1", {}))
    a2, l2 = gen_p2(ld_rec=g("p2_ld"), ld_m=g("p2_ldm"), st_part=g("p2_st"), stamps=g("stamps", False), **kw.get("p2", {}))
    a3, n3, b3 = gen_p3(ld_part=g("p3_ld"), ld_m=g("p3_ldm"), st_out=g("p3_st"), stamps=g("stamps", False), **kw.get("p3", {}))
    txt = assemble_file([("p1_kernel", NT//2, 1024, l1), ("p2_kernel", NQ*NOB, 1024, l2), ("p3_kernel", n3, b3, 0)],
        [("p1_kernel", a1, 128, 102), ("p2_kernel", a2, 128, 102), ("p3_kernel", a3, 64, 48)])
    open(path, "w").write(txt)
if __name__ == "__main__":
    kw = json.loads(sys.argv[2]) if len(sys.argv) > 2 else {}
    build(sys.argv[1], **kw)
```

```python
from common import *
from cfg import *

def gen_p1(name="p1_kernel", ld_in="nt", st_rec="", st_off="", stamps=False, warm=True, warmd=True):
    a = Asm(); kernel_begin(a, name)
    CNT = [0, NKEY*4]; TOT = NKEY*8; IMG = TOT + 16
    LDS = IMG + TREC*6
    NG = 6; TAIL = TREC - NG*4096
    I = [lambda s: 32+s if s < 24 else 28, lambda s: 80+s if s < 24 else 30]
    O = [lambda s: 56+s if s < 24 else 29, lambda s: 104+s if s < 24 else 31]
    vT16, vT8, vOne, vSix = 1, 2, 3, 4
    T0 = 5
    sIn, sOut, sAng, sRec, sOff = 8, 12, 16, 20, 28
    sMob, sNob, sMir, sNir, sFreq, sHi, sTmp, sWave = 32, 33, 34, 35, 36, 37, 38, 39
    sTail = 40
    sRB, sSg, sTop = 96, 97, 95
    sSt = 44
    vm = SB(a, "vmcnt", 63); lg = SB(a, "lgkmcnt", 15)
    nst = [0]
    def stamp(op="s_memtime"):
        if stamps:
            a(f"{op} s[{sSt+2*nst[0]}:{sSt+2*nst[0]+1}]")
            nst[0] += 1
    a(f"""s_cmp_ge_u32 s2, {NT//2}
s_cbranch_scc1 L_{name}_end
s_load_dwordx4 s[4:7], s[0:1], {KA['idx_in']}
s_load_dwordx2 s[40:41], s[0:1], {KA['angle']}
s_load_dwordx2 s[42:43], s[0:1], {KA['freq']}
s_load_dwordx2 s[36:37], s[0:1], {KA['ws']}
v_lshlrev_b32 v{vT16}, 4, v0
v_lshlrev_b32 v{vT8}, 3, v0
s_mul_i32 s3, s2, {2*TREC*4}
s_waitcnt lgkmcnt(0)""")
    stamp("s_memrealtime")
    stamp()
    for (d, b) in ((sIn, 4), (sOut, 6)):
        a(f"""s_add_u32 s{d}, s{b}, s3
s_addc_u32 s{d+1}, s{b+1}, 0
s_mov_b32 s{d+2}, {2*TREC*4}
s_mov_b32 s{d+3}, 0x00020000""")
    a(f"""s_lshr_b32 s3, s3, 1
s_add_u32 s{sAng}, s40, s3
s_addc_u32 s{sAng+1}, s41, 0
s_mov_b32 s{sAng+2}, {2*TREC*2}
s_mov_b32 s{sAng+3}, 0x00020000""")
    angreg = {}
    def ld_idx(t, g):
        if g < NG:
            a(f"s_mov_b32 s{sTmp}, {t*TREC*4 + g*16384}")
            a(f"buffer_load_dwordx4 v[{O[t](4*g)}:{O[t](4*g)+3}], v{vT16}, s[{sOut}:{sOut+3}], s{sTmp} offen {ld_in}")
            vm.issue(("o", t, g))
            a(f"buffer_load_dwordx4 v[{I[t](4*g)}:{I[t](4*g)+3}], v{vT16}, s[{sIn}:{sIn+3}], s{sTmp} offen {ld_in}")
            vm.issue(("i", t, g))
        else:
            a(f"s_mov_b32 s{sTmp}, {t*TREC*4 + NG*16384}")
            a(f"v_lshlrev_b32 v{I[t](24)}, 2, v0")
            a(f"v_cndmask_b32 v{I[t](24)}, -16, v{I[t](24)}, s[{sTail}:{sTail+1}]")
            a(f"buffer_load_dword v{O[t](24)}, v{I[t](24)}, s[{sOut}:{sOut+3}], s{sTmp} offen {ld_in}")
            vm.issue(("o", t, g))
            a(f"buffer_load_dword v{I[t](24)}, v{I[t](24)}, s[{sIn}:{sIn+3}], s{sTmp} offen {ld_in}")
            vm.issue(("i", t, g))
    def ld_ang(t, g, r):
        angreg[(t, g)] = r
        if g < NG:
            a(f"s_mov_b32 s{sTmp}, {t*TREC*2 + g*8192}")
            a(f"buffer_load_dwordx2 v[{r}:{r+1}], v{vT8}, s[{sAng}:{sAng+3}], s{sTmp} offen {ld_in}")
        else:
            a(f"s_mov_b32 s{sTmp}, {t*TREC*2 + NG*8192}")
            a(f"v_lshlrev_b32 v{r}, 1, v0")
            a(f"v_cndmask_b32 v{r}, -16, v{r}, s[{sTail}:{sTail+1}]")
            a(f"buffer_load_ushort v{r}, v{r}, s[{sAng}:{sAng+3}], s{sTmp} offen {ld_in}")
        vm.issue(("a", t, g))
    def pktA(g):
        ld_idx(0, g)
        ld_ang(0, g, 20 + 2*(g % 4) if g < NG else 19)
    pktA(0); pktA(1); pktA(2)
    if warm:
        a(f"""s_load_dwordx2 s[{sRec}:{sRec+1}], s[0:1], {KA['m']}
s_mul_i32 s3, s2, 196
v_add_lshl_u32 v18, v0, s3, 7
s_mov_b32 s{sRec+2}, {E*8}
s_mov_b32 s{sRec+3}, 0x00020000
v_cmp_gt_u32 vcc, 196, v0
s_mov_b64 exec, vcc
s_waitcnt lgkmcnt(0)
buffer_load_dword v18, v18, s[{sRec}:{sRec+3}], 0 offen
s_mov_b64 exec, -1""")
        vm.issue("warm")
    if warmd:
        a(f"""s_load_dwordx2 s[{sRec}:{sRec+1}], s[0:1], {KA['dist']}
s_mul_i32 s3, s2, 49
v_add_lshl_u32 v17, v0, s3, 7
s_mov_b32 s{sRec+2}, {E*2}
s_mov_b32 s{sRec+3}, 0x00020000
v_cmp_gt_u32 vcc, 49, v0
s_mov_b64 exec, vcc
s_waitcnt lgkmcnt(0)
buffer_load_dword v17, v17, s[{sRec}:{sRec+3}], 0 offen
s_mov_b64 exec, -1""")
        vm.issue("warmd")
    a(f"""s_load_dword s{sFreq+6}, s[42:43], 0
s_mul_i32 s3, s2, {2*TS}
s_add_u32 s{sRec}, s36, s3
s_addc_u32 s{sRec+1}, s37, 0
s_mov_b32 s{sRec+2}, {TREC*6}
s_mov_b32 s{sRec+3}, 0x00020000
s_add_u32 s{sRec+4}, s{sRec}, {TS}
s_addc_u32 s{sRec+5}, s{sRec+1}, 0
s_mov_b32 s{sRec+6}, {TREC*6}
s_mov_b32 s{sRec+7}, 0x00020000
s_mul_i32 s3, s2, {2*OFF_TILE}
s_add_u32 s3, s3, {WS_OFF}
s_add_u32 s{sOff}, s36, s3
s_addc_u32 s{sOff+1}, s37, 0
s_mov_b32 s{sOff+2}, {2*OFF_TILE}
s_mov_b32 s{sOff+3}, 0x00020000""")
    if stamps:
        a(f"s_mov_b64 s[98:99], s[36:37]")
    a(f"""s_mov_b32 s{sMob}, {M_OB}
s_mov_b32 s{sNob}, {-D_OB & 0xffffffff}
s_mov_b32 s{sMir}, {M_IR}
s_mov_b32 s{sNir}, {-D_IR & 0xffffffff}
s_mov_b32 s{sHi}, 0xffff0000
s_mov_b32 s{sRB}, {RB}
s_mov_b32 s{sSg}, 0x04000400
s_mov_b32 s{sTop}, 0xffe00000
v_mov_b32 v{vOne}, 1
v_mov_b32 v{vSix}, 6
v_lshrrev_b32 v{T0}, 6, v0
v_mov_b32 v6, 0
v_mov_b32 v7, 0
v_mov_b32 v8, 0
v_mov_b32 v9, 0
v_readfirstlane_b32 s{sWave}, v{T0}
s_waitcnt lgkmcnt(0)
s_lshl_b32 s{sFreq}, s{sFreq+6}, 16
v_cmp_gt_u32 vcc, {2*NKEY//4}, v0
s_and_saveexec_b64 s[{sTail}:{sTail+1}], vcc
ds_write_b128 v{vT16}, v[6:9]
s_mov_b64 exec, -1
s_movk_i32 s{sTmp}, {TAIL}
v_cmp_gt_u32 s[{sTail}:{sTail+1}], s{sTmp}, v0
s_waitcnt lgkmcnt(0)
s_barrier""")
    def keys(t, g):
        slots = range(4*g, 4*g+4) if g < NG else [24]
        vm.wait(("o", t, g))
        for k, s in enumerate(slots):
            a(f"v_mul_hi_u32_u24 v{T0+k}, s{sMob}, v{O[t](s)}")
        for k, s in enumerate(slots):
            a(f"v_mad_i32_i24 v{O[t](s)}, v{T0+k}, s{sNob}, v{O[t](s)}")
        vm.wait(("i", t, g))
        for k, s in enumerate(slots):
            a(f"v_mul_hi_u32_u24 v{T0+4+k}, s{sMir}, v{I[t](s)}")
        for k, s in enumerate(slots):
            a(f"v_mad_i32_i24 v{I[t](s)}, v{T0+4+k}, s{sNir}, v{I[t](s)}")
            a(f"v_lshl_add_u32 v{T0+k}, v{T0+4+k}, 6, v{T0+k}")
        for k, s in enumerate(slots):
            a(f"v_mul_u32_u24 v{T0+4+k}, {MBIN}, v{I[t](s)}")
            a(f"v_lshl_add_u32 v{I[t](s)}, v{O[t](s)}, 7, v{I[t](s)}")
            a(f"v_lshlrev_b32 v{O[t](s)}, 2, v{T0+k}")
        if g == NG:
            a(f"s_mov_b64 exec, s[{sTail}:{sTail+1}]")
        for k, s in enumerate(slots):
            a(f"ds_add_u32 v{O[t](s)}, v{vOne} offset:{CNT[t]}")
        if g == NG:
            a("s_mov_b64 exec, -1")
        for k, s in enumerate(slots):
            a(f"v_mul_u32_u24_sdwa v{T0+k}, s{sRB}, v{T0+4+k} dst_sel:DWORD dst_unused:UNUSED_PAD src0_sel:DWORD src1_sel:WORD_1")
            a(f"v_and_or_b32 v{O[t](s)}, v{T0+4+k}, s{sHi}, v{O[t](s)}")
        for k, s in enumerate(slots):
            a(f"v_sub_u32 v{I[t](s)}, v{I[t](s)}, v{T0+k}")
    def coss(t, g):
        r = angreg[(t, g)]
        vm.wait(("a", t, g))
        n = 4 if g < NG else 1
        np_ = (n+1)//2
        def unpack():
            for k in range(n):
                if k % 2 == 0:
                    a(f"v_lshlrev_b32 v{T0+k}, 16, v{r+k//2}")
                else:
                    a(f"v_and_b32 v{T0+k}, 0xffff0000, v{r+k//2}")
        lab = f"L_{name}_f{t}_{g}"
        a(f"s_cmp_eq_u32 s{sFreq}, 1.0\ns_cbranch_scc1 {lab}")
        unpack()
        for k in range(n):
            a(f"v_mul_f32 v{T0+k}, s{sFreq}, v{T0+k}")
        for p in range(np_):
            a(f"v_cvt_pk_bf16_f32 v{r+p}, v{T0+2*p}, v{T0+min(2*p+1, n-1)}")
        a(f"{lab}:")
        unpack()
        for k in range(n):
            a(f"v_mul_f32 v{T0+k}, 0.15915494, v{T0+k}")
        for k in range(n):
            a(f"v_fract_f32 v{T0+k}, v{T0+k}")
        for k in range(n):
            a(f"v_cos_f32 v{T0+k}, v{T0+k}")
        if n == 1:
            a("s_nop 0")
        for k in range(n):
            a(f"v_mul_f32 v{T0+k}, 0x03800000, v{T0+k}")
        for p in range(np_):
            a(f"v_cvt_pk_bf16_f32 v{T0+4+p}, v{T0+2*p}, v{T0+min(2*p+1, n-1)}")
        for p in range(np_):
            a(f"v_lshrrev_b32 v{T0+p}, 5, v{T0+4+p}")
        for p in range(np_):
            a(f"v_bfi_b32 v{T0+4+p}, s{sSg}, v{T0+p}, v{T0+4+p}")
        slots = list(range(4*g, 4*g+4)) if g < NG else [24]
        for k, s in enumerate(slots):
            if k % 2 == 0:
                a(f"v_lshl_or_b32 v{I[t](s)}, v{T0+4+k//2}, 21, v{I[t](s)}")
            else:
                a(f"v_lshlrev_b32 v{T0+k//2}, 5, v{T0+4+k//2}")
        for k, s in enumerate(slots):
            if k % 2 == 1:
                a(f"v_and_or_b32 v{I[t](s)}, v{T0+k//2}, s{sTop}, v{I[t](s)}")
    def scan(t):
        C = {c: 6 + c for c in range(NC)}
        S = {c: 12 + c for c in range(NC)}
        lab = f"L_{name}_scan{t}"
        a(f"""s_waitcnt lgkmcnt(0)
s_barrier
s_cmp_ge_u32 s{sWave}, 4
s_cbranch_scc1 {lab}_a
s_mul_i32 s{sTmp}, s{sWave}, {NC*256 - 256}
v_lshl_add_u32 v5, v0, 2, s{sTmp}""")
        for c in range(NC):
            a(f"ds_read_b32 v{C[c]}, v5 offset:{CNT[t] + 256*c}")
        a("s_waitcnt lgkmcnt(0)")
        for c in range(NC):
            a(f"v_add_u32_dpp v{S[c]}, v{C[c]}, v{C[c]} row_shr:1 row_mask:0xf bank_mask:0xf bound_ctrl:0")
        for sh in (2, 4, 8):
            for c in range(NC):
                a(f"v_add_u32_dpp v{S[c]}, v{S[c]}, v{S[c]} row_shr:{sh} row_mask:0xf bank_mask:0xf bound_ctrl:0")
        for c in range(NC):
            a(f"v_add_u32_dpp v{S[c]}, v{S[c]}, v{S[c]} row_bcast:15 row_mask:0xa bank_mask:0xf")
        for c in range(NC):
            a(f"v_add_u32_dpp v{S[c]}, v{S[c]}, v{S[c]} row_bcast:31 row_mask:0xc bank_mask:0xf")
        tot = [4, 5, 6, 7, 42, 43]
        for c in range(NC):
            a(f"v_readlane_b32 s{tot[c]}, v{S[c]}, 63")
        for c in range(NC):
            a(f"v_sub_u32 v{S[c]}, v{S[c]}, v{C[c]}")
        for c in range(1, NC):
            a(f"s_add_u32 s{tot[c]}, s{tot[c]}, s{tot[c-1]}")
        for c in range(1, NC):
            a(f"v_add_u32 v{S[c]}, s{tot[c-1]}, v{S[c]}")
        a(f"""s_lshl_b32 s{sTmp}, s{sWave}, 2
v_mov_b32 v18, s{tot[NC-1]}
v_mov_b32 v19, s{sTmp}
ds_write_b32 v19, v18 offset:{TOT}
s_waitcnt lgkmcnt(0)
{lab}_a:
s_barrier
s_cmp_ge_u32 s{sWave}, 4
s_cbranch_scc1 {lab}_b
v_and_b32 v19, 3, v0
v_cmp_gt_u32 vcc, s{sWave}, v19
v_lshlrev_b32 v18, 2, v19
ds_read_b32 v18, v18 offset:{TOT}
s_waitcnt lgkmcnt(0)
v_cndmask_b32 v18, 0, v18, vcc
s_nop 1
v_add_u32_dpp v18, v18, v18 quad_perm:[1,0,3,2] row_mask:0xf bank_mask:0xf
s_nop 1
v_add_u32_dpp v18, v18, v18 quad_perm:[2,3,0,1] row_mask:0xf bank_mask:0xf""")
        for c in range(NC):
            a(f"v_add_u32 v{S[c]}, v18, v{S[c]}")
        for c in range(NC):
            a(f"v_lshl_or_b32 v{C[c]}, v{C[c]}, 16, v{S[c]}")
            a(f"v_mad_u32_u24 v{S[c]}, v{S[c]}, 6, 2")
        for c in range(NC):
            a(f"ds_write_b32 v5, v{S[c]} offset:{CNT[t] + 256*c}")
        a(f"""v_mul_u32_u24 v18, {4*NC}, v0
s_mov_b32 s{sTmp}, {t*OFF_TILE}
buffer_store_dwordx4 v[6:9], v18, s[{sOff}:{sOff+3}], s{sTmp} offen {st_off}
{'buffer_store_dwordx2 v[10:11]' if NC == 6 else 'buffer_store_dword v10'}, v18, s[{sOff}:{sOff+3}], s{sTmp} offen offset:16 {st_off}
s_waitcnt lgkmcnt(0)
{lab}_b:
s_barrier""")
        lg.q = []
    def scatter(t, hooks):
        D = 4
        K = lambda s: T0 + (s % (D+1))
        order = [24] + list(range(24))
        def rtn(j):
            s = order[j]
            a(f"v_and_b32 v{K(j)}, 0xffff, v{O[t](s)}")
            if s == 24: a(f"s_mov_b64 exec, s[{sTail}:{sTail+1}]")
            a(f"ds_add_rtn_u32 v{K(j)}, v{K(j)}, v{vSix} offset:{CNT[t]}")
            if s == 24: a("s_mov_b64 exec, -1")
            lg.issue(("r", j))
        for j in range(D):
            rtn(j)
        for j in range(25):
            if j + D < 25:
                rtn(j + D)
            s = order[j]
            t1, t2 = 10 + 2*(j % 2), 11 + 2*(j % 2)
            lg.wait(("r", j))
            a(f"v_and_b32 v{t1}, -4, v{K(j)}")
            a(f"v_and_b32 v{t2}, 2, v{K(j)}")
            a(f"v_mad_u32_u24 v{t2}, v{t2}, 3, v{t1}")
            if s == 24: a(f"s_mov_b64 exec, s[{sTail}:{sTail+1}]")
            a(f"ds_write_b32 v{t1}, v{I[t](s)} offset:{IMG}")
            lg.issue(("w", j))
            a(f"ds_write_b16_d16_hi v{t2}, v{O[t](s)} offset:{IMG-2}")
            lg.issue(("w2", j))
            if s == 24: a("s_mov_b64 exec, -1")
            if j in hooks:
                hooks[j]()
        a("s_waitcnt lgkmcnt(0)\ns_barrier")
        lg.q = []
    def readout(R):
        a(f"v_add_u32 v5, {3*16384}, v{vT16}")
        a(f"v_add_u32 v6, {6*16384}, v{vT16}")
        a(f"v_add_u32 v7, {9*16384}, v{vT16}")
        for j in range(10):
            base = [vT16, 5, 6, 7][j//3]
            if j == 9:
                a(f"v_cmp_gt_u32 vcc, {TREC*6//16 - 9*1024}, v0")
                a(f"s_mov_b64 exec, vcc")
            a(f"ds_read_b128 v[{R+4*j}:{R+4*j+3}], v{base} offset:{IMG + (j % 3)*16384}")
            lg.issue(("img", j))
            if j == 9:
                a("s_mov_b64 exec, -1")
    def store(t, R, j):
        lg.wait(("img", j))
        a(f"s_mov_b32 s{sTmp}, {j*16384}")
        if j == 9:
            a(f"v_cmp_gt_u32 vcc, {TREC*6//16 - 9*1024}, v0")
            a(f"s_mov_b64 exec, vcc")
        a(f"buffer_store_dwordx4 v[{R+4*j}:{R+4*j+3}], v{vT16}, s[{sRec+4*t}:{sRec+4*t+3}], s{sTmp} offen {st_rec}")
        if j == 9:
            a("s_mov_b64 exec, -1")
        vm.issue(("st", t, j))

    nxt = [lambda: pktA(3), lambda: pktA(4), lambda: pktA(5), lambda: (pktA(6), ld_idx(1, 0)), None, lambda: ld_idx(1, 1), None]
    for g in range(NG+1):
        if g == 0:
            nxt[g]()
        keys(0, g)
        coss(0, g)
        if g > 0 and nxt[g]:
            nxt[g]()
    stamp()
    scan(0)
    stamp()
    scatter(0, {3: lambda: ld_idx(1, 2), 11: lambda: ld_idx(1, 3), 19: lambda: ld_idx(1, 4)})
    stamp()
    readout(32)
    ld_idx(1, 5)
    keys(1, 0); keys(1, 1); keys(1, 2)
    ld_idx(1, 6)
    for g in range(4):
        ld_ang(1, g, 20 + 2*g)
    keys(1, 3)
    ld_ang(1, 4, 72); ld_ang(1, 5, 74); ld_ang(1, 6, 19)
    a("s_waitcnt lgkmcnt(0)"); lg.q = []
    keys(1, 4)
    store(0, 32, 0)
    keys(1, 5); keys(1, 6)
    store(0, 32, 1)
    for g in range(NG+1):
        coss(1, g)
    store(0, 32, 2)
    stamp()
    scan(1)
    stamp()
    scatter(1, {3*k: (lambda k=k: store(0, 32, 3+k)) for k in range(7)})
    stamp()
    a(f"""s_or_b32 s{sTmp}, s2, s{sWave}
s_cbranch_scc1 L_{name}_w0
s_load_dwordx8 s[8:15], s[0:1], {KA['w_rbf']}
v_lshlrev_b32 v76, 1, v0
s_mov_b32 exec_hi, 0
s_waitcnt lgkmcnt(0)
global_load_ushort v72, v76, s[8:9]
global_load_ushort v73, v76, s[10:11]
s_mov_b32 exec_lo, 0xffff
global_load_ushort v74, v76, s[12:13]
global_load_ushort v75, v76, s[14:15]
s_mov_b64 exec, -1
L_{name}_w0:""")
    readout(80)
    for j in range(10):
        store(1, 80, j)
    a(f"""s_or_b32 s{sTmp}, s2, s{sWave}
s_cbranch_scc1 L_{name}_w1
v_and_b32 v76, 3, v0
v_lshrrev_b32 v77, 2, v0
v_mul_u32_u24 v76, 24, v76
v_add_lshl_u32 v76, v76, v77, 1
s_add_u32 s8, s{sRec}, {WS_WT}
s_addc_u32 s9, s{sRec+1}, 0
v_lshlrev_b32 v78, 7, v0
v_add_u32 v78, {WS_FLAG - WS_WT}, v78
v_mov_b32 v79, 0
global_store_dword v78, v79, s[8:9]
s_mov_b32 exec_hi, 0
s_waitcnt vmcnt(11)
global_store_short v76, v72, s[8:9] offset:32
global_store_short v76, v73, s[8:9] offset:16
s_mov_b32 exec_lo, 0xffff
global_store_short v76, v74, s[8:9]
global_store_short v76, v75, s[8:9] offset:8
s_mov_b64 exec, -1
L_{name}_w1:""")
    if stamps:
        a("s_waitcnt vmcnt(0)")
        stamp()
        stamp("s_memrealtime")
        a(f"""s_waitcnt lgkmcnt(0)
s_lshl_b32 s3, s2, 4
s_add_u32 s3, s3, s{sWave}
s_lshl_b32 s3, s3, 7
s_add_u32 s3, s3, {WS_DBG}
s_add_u32 s98, s98, s3
s_addc_u32 s99, s99, 0
v_mov_b32 v5, 0
s_mov_b64 exec, 1""")
        for k in range(nst[0]):
            a(f"v_mov_b32 v6, s{sSt+2*k}\nv_mov_b32 v7, s{sSt+2*k+1}\nglobal_store_dwordx2 v5, v[6:7], s[98:99] offset:{8*k}")
    a(f"L_{name}_end:\ns_endpgm")
    return a, LDS
```

```python
import sys, json
from common import *
from cfg import *
from p1 import gen_p1
import importlib
from p3 import gen_p3
def build(path, **kw):
    gen_p2 = importlib.import_module(kw.get('p2mod', 'p2f')).gen_p2
    g = lambda k, d="": kw.get(k, d)
    a1, l1 = gen_p1(ld_in=g("p1_ld", "nt"), st_rec=g("p1_st"), st_off=g("p1_sto"), stamps=g("stamps", False), **kw.get("p1", {}))
    a2, l2 = gen_p2(ld_rec=g("p2_ld"), ld_m=g("p2_ldm"), st_part=g("p2_st", "sc1"), stamps=g("stamps", False), **kw.get("p2", {}))
    a3, n3, b3 = gen_p3(ld_part=g("p3_ld"), ld_m=g("p3_ldm"), st_out=g("p3_st"), stamps=g("stamps", False), **kw.get("p3", {}))
    L = [("p1_kernel", NT//2, 1024, l1), ("p2_kernel", NQ*NOB, 1024, l2), ("p3_kernel", n3, b3, 0)]
    K = [("p1_kernel", a1, 128, 102), ("p2_kernel", a2, 128, 102), ("p3_kernel", a3, 64, 48)]
    if kw.get('p2mod', 'p2f').startswith('p2f'):
        L, K = L[:2], K[:2]
    txt = assemble_file(L, K)
    open(path, "w").write(txt)
if __name__ == "__main__":
    kw = json.loads(sys.argv[2]) if len(sys.argv) > 2 else {}
    build(sys.argv[1], **kw)
```

```python
import sys, json
from common import *
from cfg import *
import importlib
from p3 import gen_p3
def build(path, **kw):
    kw.setdefault('p2mod', 'p2dt')
    gen_p2 = importlib.import_module(kw['p2mod']).gen_p2
    gen_p1 = importlib.import_module('p1t' if kw['p2mod'].endswith('t') else 'p1').gen_p1
    g = lambda k, d="": kw.get(k, d)
    a1, l1 = gen_p1(ld_in=g("p1_ld", "nt"), st_rec=g("p1_st", "sc1"), st_off=g("p1_sto"), stamps=g("stamps", False), **kw.get("p1", {}))
    a2, l2 = gen_p2(ld_rec=g("p2_ld"), ld_m=g("p2_ldm"), st_part=g("p2_st", "sc1"), stamps=g("stamps", False), **kw.get("p2", {}))
    a3, n3, b3 = gen_p3(ld_part=g("p3_ld"), ld_m=g("p3_ldm"), st_out=g("p3_st"), stamps=g("stamps", False), **kw.get("p3", {}))
    L = [("p1_kernel", NT//2, 1024, l1), ("p2_kernel", NQ*NOB, 1024, l2), ("p3_kernel", n3, b3, 0)]
    K = [("p1_kernel", a1, 128, 102), ("p2_kernel", a2, 128, 102), ("p3_kernel", a3, 64, 48)]
    if kw['p2mod'] not in ('p2', 'p2_v8'):
        L, K = L[:2], K[:2]
    if kw.get('only1'):
        L = L[:1]
    txt = assemble_file(L, K)
    open(path, "w").write(txt)
if __name__ == "__main__":
    kw = json.loads(sys.argv[2]) if len(sys.argv) > 2 else {}
    build(sys.argv[1], **kw)
```

```python
import sys, re
from common import *
s=open('../exp/BQ.s').read()
def mk(path, wb, inv, slp, nrep):
    i1=s.index(".globl p1_kernel"); i2=s.index(".globl p2_kernel"); i3=s.index('.section .rodata')
    p1=s[i1:i2]; p2=s[i2:i3]
    p1=p1.replace("L_p1_kernel_end:\n    s_endpgm\n","").replace("L_p1_kernel_end","L_p2_kernel_end")
    p2=p2[p2.index("    s_setprio 3"):].replace("L_code_end - p2_kernel - 256","256")
    glue=f"""    s_load_dwordx2 s[4:5], s[0:1], 96
    s_waitcnt vmcnt(0) lgkmcnt(0)
    s_barrier
    s_cmp_lg_u32 s39, 0
    s_cbranch_scc1 L_g1
    {"buffer_wbl2 sc1" if wb else "s_nop 0"}
    s_waitcnt vmcnt(0)
    v_lshlrev_b32 v5, 6, v0
    v_mov_b32 v6, 1
    s_mov_b64 exec, {(1<<nrep)-1}
    global_atomic_add v5, v6, s[4:5] sc1
    s_mov_b64 exec, 1
    s_and_b32 s6, s2, {nrep-1}
    s_lshl_b32 s6, s6, 6
    v_mov_b32 v5, s6
    v_mov_b32 v6, 0
    s_mov_b32 s7, 0
L_g0:
    global_atomic_add v7, v5, v6, s[4:5] sc0 sc1
    s_waitcnt vmcnt(0)
    v_readfirstlane_b32 s6, v7
    s_add_u32 s7, s7, 1
    s_cmp_ge_u32 s6, 256
    s_cbranch_scc1 L_g2
    s_sleep {slp}
    s_cmp_lt_u32 s7, 5000
    s_cbranch_scc1 L_g0
L_g2:
    s_mov_b64 exec, -1
    {"buffer_inv sc1" if inv else "s_nop 0"}
    s_waitcnt vmcnt(0)
L_g1:
    s_barrier
"""
    head=s[:i1]
    head=re.sub(r"; @launch kernel=p2_kernel[^\n]*\n","",head).replace("lds=157728","lds=163840")
    open(path,"w").write(head+p1+glue+p2+'.section .rodata,"a"\n'+descriptor("p1_kernel",128,102))
mk("../exp/FU1.s",1,1,8,4)
mk("../exp/FU2.s",1,0,8,4)
mk("../exp/FU3.s",1,0,2,4)
```
